```python
import torch

def _softmax(x, axis=-1):
    return torch.softmax(x, dim=axis)
def _gelu(x):
    return torch.nn.functional.gelu(x, approximate="tanh")
def _silu(x):
    return torch.nn.functional.silu(x)
def _sigmoid(x):
    return torch.sigmoid(x)
def _layernorm(x, axis=-1, eps=1e-5):
    m = x.mean(dim=axis, keepdim=True)
    v = x.var(dim=axis, keepdim=True, unbiased=False)
    return (x - m) / torch.sqrt(v + eps)
def _scatter_add(tgt, idx, src, axis=0):
    return tgt.clone().index_add_(axis, idx, src)
def _segment_sum(src, seg, n):
    out = torch.zeros((n,) + src.shape[1:], dtype=src.dtype)
    return out.index_add_(0, seg, src)
def _pad(x, pw):
    flat = tuple(v for pair in reversed(pw) for v in pair)
    return torch.nn.functional.pad(x, flat)

kernel_name = 'standalone__adm_resblock__diffusion'

def setup_inputs():

    _w = (lambda a: (lambda t: t.to(torch.bfloat16) if t.is_floating_point() else t)(torch.as_tensor(a)))
    B, C, HW, E = 2, 512, 64, 768
    sc = (9.0 * C) ** -0.5
    return {
        "x": _w((lambda *s: torch.randn(*s, dtype=torch.bfloat16) * 0.05)(B, C, HW, HW)),
        "t_emb": _w((lambda *s: torch.randn(*s, dtype=torch.bfloat16) * 0.2)(B, E)),
        "g1": _w(1.0 + 0.1 * (lambda *s: torch.randn(*s, dtype=torch.bfloat16) * 0.2)(C)),
        "be1": _w(0.1 * (lambda *s: torch.randn(*s, dtype=torch.bfloat16) * 0.2)(C)),
        "w1": _w((lambda *s: torch.randn(*s, dtype=torch.bfloat16) * 0.2)(C, C, 3, 3) * sc),
        "w_emb": _w((lambda *s: torch.randn(*s, dtype=torch.bfloat16) * 0.2)(E, C) * (E ** -0.5)),
        "g2": _w(1.0 + 0.1 * (lambda *s: torch.randn(*s, dtype=torch.bfloat16) * 0.2)(C)),
        "be2": _w(0.1 * (lambda *s: torch.randn(*s, dtype=torch.bfloat16) * 0.2)(C)),
        "w2": _w((lambda *s: torch.randn(*s, dtype=torch.bfloat16) * 0.2)(C, C, 3, 3) * sc),
    }

def reference(x, t_emb, g1, be1, w1, w_emb, g2, be2, w2):
    B, C, H, W = x.shape
    G, eps = 4, 1e-5
    def gn(z, gamma, beta):
        zr = z.reshape(B, G, (C // G) * H * W)
        mu = zr.mean(-1).reshape(B, G, 1)
        var = ((zr - mu) ** 2).mean(-1).reshape(B, G, 1)
        zn = ((zr - mu) / torch.sqrt(var + eps)).reshape(B, C, H, W)
        return zn * gamma.reshape(1, C, 1, 1) + beta.reshape(1, C, 1, 1)
    def conv3(z, w):
        zp = _pad(z, ((0, 0), (0, 0), (1, 1), (1, 1)))
        taps = [torch.einsum("bchw,oc->bohw", zp[:, :, i:i+H, j:j+W], w[:, :, i, j]) for i in range(3) for j in range(3)]
        out = taps[0]
        for t in taps[1:]:
            out = out + t
        return out
    h = conv3(_silu(gn(x, g1, be1)), w1)
    emb = _silu(t_emb) @ w_emb
    h = h + emb.reshape(B, C, 1, 1)
    h = conv3(_silu(gn(h, g2, be2)), w2)
    return x + h
```

```python
import sys, argparse

A1_OFF = 0x0000000
A2_OFF = 0x0800000
W1R_OFF = 0x1000000
W2R_OFF = 0x1800000
ST1_OFF = 0x2000000
ST2_OFF = 0x2002000
EMB_OFF = 0x2004000
DBG_OFF = 0x2100000
WS_USED = 0x2200000
OOB = 0x80000000
SENT = 0xFFFFFFFF

X_BYTES = 2 * 512 * 64 * 64 * 2
W_BYTES = 512 * 512 * 9 * 2

ROWP = 1056
PLANEP = 6 * ROWP
A_BYTES = 2 * PLANEP
B_BYTES = 18 * 1024
SLOT = A_BYTES + B_BYTES

LOG2E = 1.4426950408889634


def f32bits(x):
    import struct
    return struct.unpack("<I", struct.pack("<f", x))[0]


class Asm:
    def __init__(self):
        self.lines = []

    def __call__(self, s):
        self.lines.append("    " + s)

    def label(self, l):
        self.lines.append(l + ":")

    def raw(self, s):
        self.lines.append(s)

    def text(self):
        return "\n".join(self.lines) + "\n"


def vr(b, n=1):
    return f"v{b}" if n == 1 else f"v[{b}:{b + n - 1}]"


def sr(b, n=1):
    return f"s{b}" if n == 1 else f"s[{b}:{b + n - 1}]"


def srd(a, d, base, nbytes):
    a(f"s_mov_b32 s{d}, s{base}")
    a(f"s_and_b32 s{d + 1}, s{base + 1}, 0xffff")
    a(f"s_mov_b32 s{d + 2}, {nbytes:#x}")
    a(f"s_mov_b32 s{d + 3}, 0x20000")


def allreduce_add(a, regs, tmps):
    steps = ["quad_perm:[1,0,3,2]", "quad_perm:[2,3,0,1]", "row_half_mirror", "row_mirror"]
    n = len(regs)
    pad = max(0, 3 - n)
    for st in steps:
        if pad:
            a(f"s_nop {pad - 1 if pad > 0 else 0}")
        for r in regs:
            a(f"v_add_f32_dpp v{r}, v{r}, v{r} {st} row_mask:0xf bank_mask:0xf")
    for sw in ("v_permlane16_swap_b32", "v_permlane32_swap_b32"):
        for r, t in zip(regs, tmps):
            a(f"v_mov_b32 v{t}, v{r}")
        a("s_nop 1")
        for r, t in zip(regs, tmps):
            a(f"{sw} v{r}, v{t}")
        a("s_nop 1")
        for r, t in zip(regs, tmps):
            a(f"v_add_f32 v{r}, v{r}, v{t}")


def kernel_header(a, name):
    a.raw(f".globl {name}")
    a.raw(".p2align 8")
    a.raw(f".type {name},@function")
    a.label(name)


def kernel_desc(name, vgpr, sgpr=102, accum=None):
    if accum is None:
        accum = (vgpr + 3) // 4 * 4
    return f""".p2align 6
.amdhsa_kernel {name}
  .amdhsa_next_free_vgpr {vgpr}
  .amdhsa_next_free_sgpr {sgpr}
  .amdhsa_accum_offset {accum}
  .amdhsa_group_segment_fixed_size 0
  .amdhsa_kernarg_size 96
  .amdhsa_user_sgpr_count 2
  .amdhsa_user_sgpr_kernarg_segment_ptr 1
  .amdhsa_system_sgpr_workgroup_id_x 1
  .amdhsa_float_denorm_mode_32 3
.end_amdhsa_kernel
"""


def combine_stats(a, p, mean, rstd, t0, t1):
    a(f"v_add_f32 v{mean}, v{p}, v{p + 2}")
    allreduce_add(a, [mean], [t0])
    a(f"v_mul_f32 v{mean}, {f32bits(1.0 / 128):#x}, v{mean}")
    a(f"v_sub_f32 v{p}, v{p}, v{mean}")
    a(f"v_sub_f32 v{p + 2}, v{p + 2}, v{mean}")
    a(f"v_mul_f32 v{t1}, v{p}, v{p}")
    a(f"v_fmac_f32 v{t1}, v{p + 2}, v{p + 2}")
    a(f"v_add_f32 v{rstd}, v{p + 1}, v{p + 3}")
    a(f"v_fmac_f32 v{rstd}, {f32bits(4096.0):#x}, v{t1}")
    allreduce_add(a, [rstd], [t0])
    a(f"v_mov_b32 v{t0}, {f32bits(1e-5):#x}")
    a(f"v_fmac_f32 v{t0}, {f32bits(1.0 / 524288):#x}, v{rstd}")
    a(f"v_rsq_f32 v{rstd}, v{t0}")
    a("s_nop 0")
    a(f"v_mul_f32 v{t1}, v{t0}, v{rstd}")
    a(f"v_mul_f32 v{t1}, v{t1}, v{rstd}")
    a(f"v_mov_b32 v{t0}, {f32bits(1.5):#x}")
    a(f"v_fmac_f32 v{t0}, -0.5, v{t1}")
    a(f"v_mul_f32 v{rstd}, v{rstd}, v{t0}")


def gen_prep(a, opt):
    name = "prep_kernel"
    kernel_header(a, name)
    NW = 256 + 32
    a(f"s_cmp_ge_u32 s2, {NW}")
    a("s_cbranch_scc1 prep_end")
    a("s_load_dwordx4 s[4:7], s[0:1], 0")
    a("s_load_dwordx4 s[8:11], s[0:1], 32")
    a("s_load_dwordx2 s[12:13], s[0:1], 64")
    a("s_load_dwordx2 s[14:15], s[0:1], 88")
    a("v_lshrrev_b32 v1, 6, v0")
    a("v_and_b32 v0, 63, v0")
    a("s_nop 0")
    a("v_readfirstlane_b32 s3, v1")
    a("s_waitcnt lgkmcnt(0)")
    srd(a, 16, 4, X_BYTES)
    srd(a, 20, 14, WS_USED)
    srd(a, 28, 6, 2 * 768 * 2)
    srd(a, 32, 10, 768 * 512 * 2)
    a("s_lshl_b32 s36, s2, 2")
    a("s_add_u32 s36, s36, s3")
    a("s_cmp_ge_u32 s36, 512")
    a("s_cselect_b32 s24, s12, s8")
    a("s_cselect_b32 s25, s13, s9")
    a(f"s_mov_b32 s40, {W1R_OFF:#x}")
    a(f"s_cselect_b32 s40, {W2R_OFF:#x}, s40")
    a("s_and_b32 s25, s25, 0xffff")
    a(f"s_mov_b32 s26, {W_BYTES:#x}")
    a("s_mov_b32 s27, 0x20000")
    a("s_cmp_ge_u32 s2, 256")
    a("s_cbranch_scc1 prep_emb")
    a("v_lshlrev_b32 v2, 4, v0")
    a("s_lshl_b32 s37, s36, 13")
    a("s_add_u32 s38, s37, 4096")
    X = 8
    for j in range(8):
        so = "s37" if j < 4 else "s38"
        a(f"buffer_load_dwordx4 {vr(X + 4 * j, 4)}, v2, s[16:19], {so} offen offset:{(j % 4) * 1024}")
    a("v_and_b32 v3, 31, v0")
    a("v_lshrrev_b32 v4, 5, v0")
    a("v_mul_u32_u24 v3, 9216, v3")
    a("v_mul_u32_u24 v4, 144, v4")
    a("v_add_u32 v3, v3, v4")
    a("s_lshr_b32 s41, s36, 5")
    a("s_and_b32 s41, s41, 15")
    a("s_and_b32 s42, s36, 31")
    a(f"s_mul_i32 s43, s41, {32 * 9216}")
    a("s_mul_i32 s44, s42, 288")
    a("s_add_u32 s43, s43, s44")
    Wd = 40
    for k in range(9):
        a(f"buffer_load_dwordx4 {vr(Wd + 4 * k, 4)}, v3, s[24:27], s43 offen offset:{16 * k}")
    a("s_lshr_b32 s45, s41, 1")
    a("s_lshl_b32 s45, s45, 5")
    a("s_add_u32 s45, s45, s42")
    a("s_mul_i32 s45, s45, 18432")
    a("s_and_b32 s46, s41, 1")
    a("s_lshl_b32 s46, s46, 10")
    a("s_add_u32 s45, s45, s46")
    a("s_add_u32 s45, s45, s40")
    a("s_mov_b32 s47, 0x3f803f80")
    a("v_mov_b32 v4, 0")
    a("v_mov_b32 v5, 0")
    a("s_waitcnt vmcnt(9)")
    for j in range(32):
        a(f"v_dot2_f32_bf16 v{4 + (j & 1)}, v{X + j}, s47, v{4 + (j & 1)}")
    a("s_nop 2")
    a("v_add_f32 v4, v4, v5")
    allreduce_add(a, [4], [5])
    a(f"v_mul_f32 v4, {f32bits(-1.0 / 4096):#x}, v4")
    a("v_mov_b32 v80, 0")
    a("v_mov_b32 v81, 0")
    a("v_mov_b32 v82, 0")
    a("v_mov_b32 v83, 0")
    for j in range(32):
        t = 84 + 2 * (j & 3)
        acc = 80 + 2 * (j & 1)
        a(f"v_lshlrev_b32 v{t}, 16, v{X + j}")
        a(f"v_and_b32 v{t + 1}, 0xffff0000, v{X + j}")
        a(f"v_pk_add_f32 {vr(t, 2)}, {vr(t, 2)}, v[4:5] op_sel_hi:[1,0]")
        a(f"v_pk_fma_f32 {vr(acc, 2)}, {vr(t, 2)}, {vr(t, 2)}, {vr(acc, 2)}")
    a("v_pk_add_f32 v[80:81], v[80:81], v[82:83]")
    a("v_add_f32 v5, v80, v81")
    allreduce_add(a, [5], [6])
    a("v_sub_f32 v4, 0, v4")
    a(f"v_mov_b32 v6, {SENT:#x}")
    a(f"v_mov_b32 v7, {SENT:#x}")
    a("v_mov_b32 v80, 0")
    a("s_lshl_b32 s48, s36, 3")
    a(f"s_add_u32 s49, s48, {ST1_OFF:#x}")
    a(f"s_add_u32 s48, s48, {ST2_OFF:#x}")
    a("s_mov_b64 exec, 1")
    a("buffer_store_dwordx2 v[4:5], v80, s[20:23], s49 offen")
    a("buffer_store_dwordx2 v[6:7], v80, s[20:23], s48 offen")
    a("s_mov_b64 exec, -1")
    a("s_mov_b32 s50, 0x07060100")
    a("s_mov_b32 s51, 0x05040302")
    a("s_waitcnt vmcnt(2)")
    O = 84
    for t in range(9):
        ob = O + 4 * (t % 3)
        for j in range(4):
            e1 = 18 * j + t
            e2 = e1 + 9
            sel = "s50" if t % 2 == 0 else "s51"
            a(f"v_perm_b32 v{ob + j}, v{Wd + e2 // 2}, v{Wd + e1 // 2}, {sel}")
        if t % 2 == 0:
            a(f"buffer_store_dwordx4 {vr(ob, 4)}, v2, s[20:23], s45 offen")
        else:
            a(f"buffer_store_dwordx4 {vr(ob, 4)}, v2, s[20:23], s45 offen offset:2048")
            a("s_add_u32 s45, s45, 4096")
    a("s_endpgm")

    a.label("prep_emb")
    a("s_sub_u32 s36, s2, 256")
    a("v_lshrrev_b32 v2, 1, v0")
    a("s_mul_i32 s37, s3, 192")
    a("v_add_u32 v2, s37, v2")
    a("v_lshlrev_b32 v3, 10, v2")
    a("v_and_b32 v4, 1, v0")
    a("v_lshlrev_b32 v4, 4, v4")
    a("v_add_u32 v3, v3, v4")
    a("s_lshl_b32 s38, s36, 5")
    Wm = 8
    for p in range(6):
        a(f"buffer_load_dwordx4 {vr(Wm + 4 * p, 4)}, v3, s[32:35], s38 offen")
        if p < 5:
            a("s_add_u32 s38, s38, 32768")
    a("v_lshlrev_b32 v5, 1, v2")
    T = 32
    for b in range(2):
        for p in range(6):
            a(f"buffer_load_ushort v{T + b * 6 + p}, v5, s[28:31], 0 offen offset:{b * 1536 + p * 64}")
    ACC = 48
    for i in range(16):
        a(f"v_mov_b32 v{ACC + i}, 0")
    a("s_waitcnt vmcnt(0)")
    for i in range(12):
        a(f"v_lshlrev_b32 v{T + i}, 16, v{T + i}")
    for i in range(12):
        a(f"v_mul_f32 v{64 + i}, {f32bits(-LOG2E):#x}, v{T + i}")
    for i in range(12):
        a(f"v_exp_f32 v{64 + i}, v{64 + i}")
    for i in range(12):
        a(f"v_add_f32 v{64 + i}, 1.0, v{64 + i}")
    for i in range(12):
        a(f"v_rcp_f32 v{64 + i}, v{64 + i}")
    for i in range(12):
        a(f"v_mul_f32 v{T + i}, v{T + i}, v{64 + i}")
    for p in range(6):
        for d in range(4):
            a(f"v_lshlrev_b32 v{64 + 2 * d}, 16, v{Wm + 4 * p + d}")
            a(f"v_and_b32 v{65 + 2 * d}, 0xffff0000, v{Wm + 4 * p + d}")
        for b in range(2):
            for c in range(8):
                a(f"v_fmac_f32 v{ACC + b * 8 + c}, v{T + b * 6 + p}, v{64 + c}")
    regs = [ACC + i for i in range(16)]
    for st in ("quad_perm:[2,3,0,1]", "row_ror:4", "row_ror:8"):
        for r in regs:
            a(f"v_add_f32_dpp v{r}, v{r}, v{r} {st} row_mask:0xf bank_mask:0xf")
    for sw in ("v_permlane16_swap_b32", "v_permlane32_swap_b32"):
        for r in regs:
            a(f"v_mov_b32 v{r + 16}, v{r}")
        for r in regs:
            a(f"{sw} v{r}, v{r + 16}")
        for r in regs:
            a(f"v_add_f32 v{r}, v{r}, v{r + 16}")
    a("v_lshlrev_b32 v4, 1, v4")
    a("s_lshl_b32 s39, s3, 7")
    a("v_add_u32 v4, s39, v4")
    a("s_mov_b64 exec, 3")
    a(f"ds_write_b128 v4, {vr(ACC, 4)}")
    a(f"ds_write_b128 v4, {vr(ACC + 4, 4)} offset:16")
    a(f"ds_write_b128 v4, {vr(ACC + 8, 4)} offset:64")
    a(f"ds_write_b128 v4, {vr(ACC + 12, 4)} offset:80")
    a("s_mov_b64 exec, -1")
    a("s_waitcnt lgkmcnt(0)")
    a("s_barrier")
    a("s_cmp_lg_u32 s3, 0")
    a("s_cbranch_scc1 prep_end")
    a("v_and_b32 v5, 31, v0")
    a("v_lshlrev_b32 v5, 2, v5")
    for w in range(4):
        a(f"ds_read_b32 v{8 + w}, v5 offset:{w * 128}")
    a("v_and_b32 v6, 15, v0")
    a("v_lshlrev_b32 v6, 2, v6")
    a("v_and_b32 v7, 16, v0")
    a("v_lshlrev_b32 v7, 7, v7")
    a("v_add_u32 v6, v6, v7")
    a("s_lshl_b32 s39, s36, 6")
    a(f"s_add_u32 s39, s39, {EMB_OFF:#x}")
    a("s_waitcnt lgkmcnt(0)")
    a("v_add_f32 v8, v8, v9")
    a("v_add_f32 v10, v10, v11")
    a("v_add_f32 v8, v8, v10")
    a("s_mov_b32 exec_hi, 0")
    a("buffer_store_dword v8, v6, s[20:23], s39 offen")
    a.label("prep_end")
    a("s_endpgm")
    return name, NW, 256, 512, kernel_desc(name, 96, 64)


def gen_xform(a, opt):
    name = "xform_kernel"
    kernel_header(a, name)
    NW = 512
    a(f"s_cmp_ge_u32 s2, {NW}")
    a("s_cbranch_scc1 xform_end")
    a("s_load_dwordx2 s[4:5], s[0:1], 0")
    a("s_load_dwordx4 s[8:11], s[0:1], 16")
    a("s_load_dwordx2 s[14:15], s[0:1], 88")
    a("v_lshrrev_b32 v1, 6, v0")
    a("v_and_b32 v0, 63, v0")
    a("s_nop 0")
    a("v_readfirstlane_b32 s3, v1")
    a("s_lshl_b32 s36, s2, 2")
    a("s_nop 2")
    a("s_add_u32 s36, s36, s3")
    a("s_lshr_b32 s37, s36, 4")
    a("s_and_b32 s38, s36, 15")
    a("s_and_b32 s39, s37, 63")
    a("s_lshl_b32 s39, s39, 4")
    a("s_waitcnt lgkmcnt(0)")
    a("s_add_u32 s8, s8, s39")
    a("s_addc_u32 s9, s9, 0")
    a("s_add_u32 s10, s10, s39")
    a("s_addc_u32 s11, s11, 0")
    a("s_load_dwordx4 s[40:43], s[8:9], 0")
    a("s_load_dwordx4 s[44:47], s[10:11], 0")
    srd(a, 16, 4, X_BYTES)
    srd(a, 20, 14, WS_USED)
    a("v_lshlrev_b32 v2, 4, v0")
    a("s_lshr_b32 s48, s37, 4")
    a("s_lshl_b32 s48, s48, 10")
    a(f"s_add_u32 s48, s48, {ST1_OFF:#x}")
    a("buffer_load_dwordx4 v[4:7], v2, s[20:23], s48 offen")
    a("v_lshlrev_b32 v3, 3, v0")
    a("s_lshl_b32 s49, s37, 16")
    a("s_lshl_b32 s50, s38, 9")
    a("s_add_u32 s49, s49, s50")
    X = 16
    for c in range(8):
        a(f"buffer_load_dwordx2 {vr(X + 2 * c, 2)}, v3, s[16:19], s49 offen")
        if c < 7:
            a("s_add_u32 s49, s49, 8192")
    a("v_lshlrev_b32 v12, 6, v0")
    a("s_lshl_b32 s51, s36, 12")
    a("s_waitcnt vmcnt(8)")
    combine_stats(a, 4, 8, 9, 10, 11)
    a("s_waitcnt lgkmcnt(0)")
    for c in range(8):
        g = 40 + c // 2
        b = 44 + c // 2
        if c % 2 == 0:
            a(f"s_lshl_b32 s52, s{g}, 16")
            a(f"s_lshl_b32 s53, s{b}, 16")
        else:
            a(f"s_and_b32 s52, s{g}, 0xffff0000")
            a(f"s_and_b32 s53, s{b}, 0xffff0000")
        P = 32 + 4 * c
        a(f"v_mul_f32 v{P}, s52, v9")
        a(f"v_mov_b32 v{P + 1}, s53")
        a(f"v_fma_f32 v{P + 1}, -v8, v{P}, v{P + 1}")
        a(f"v_mul_f32 v{P + 2}, {f32bits(-LOG2E):#x}, v{P}")
        a(f"v_mul_f32 v{P + 3}, {f32bits(-LOG2E):#x}, v{P + 1}")
    Y = 64
    E = 96
    a("v_mov_b32 v10, 1.0")
    a("v_mov_b32 v11, 1.0")
    for c in range(8):
        a(f"s_waitcnt vmcnt({7 - c})")
        P = 32 + 4 * c
        y = Y + 4 * c
        e = E + 4 * (c & 1)
        for d in range(2):
            a(f"v_lshlrev_b32 v{y + 2 * d}, 16, v{X + 2 * c + d}")
            a(f"v_and_b32 v{y + 2 * d + 1}, 0xffff0000, v{X + 2 * c + d}")
        for d in range(2):
            a(f"v_pk_fma_f32 {vr(e + 2 * d, 2)}, {vr(y + 2 * d, 2)}, {vr(P + 2, 2)}, {vr(P + 2, 2)} op_sel:[0,0,1] op_sel_hi:[1,0,1]")
        for d in range(2):
            a(f"v_pk_fma_f32 {vr(y + 2 * d, 2)}, {vr(y + 2 * d, 2)}, {vr(P, 2)}, {vr(P, 2)} op_sel:[0,0,1] op_sel_hi:[1,0,1]")
        for k in range(4):
            a(f"v_exp_f32 v{e + k}, v{e + k}")
        a("s_nop 0")
        for d in range(2):
            a(f"v_pk_add_f32 {vr(e + 2 * d, 2)}, {vr(e + 2 * d, 2)}, v[10:11]")
        for k in range(4):
            a(f"v_rcp_f32 v{e + k}, v{e + k}")
        a("s_nop 0")
        for d in range(2):
            a(f"v_pk_mul_f32 {vr(y + 2 * d, 2)}, {vr(y + 2 * d, 2)}, {vr(e + 2 * d, 2)}")
    O = 104
    for px in range(4):
        for j in range(4):
            a(f"v_cvt_pk_bf16_f32 v{O + 4 * px + j}, v{Y + 8 * j + px}, v{Y + 8 * j + 4 + px}")
        a(f"buffer_store_dwordx4 {vr(O + 4 * px, 4)}, v12, s[20:23], s51 offen offset:{16 * px}")
    a.label("xform_end")
    a("s_endpgm")
    return name, NW, 256, 0, kernel_desc(name, 120, 64)


def gen_conv(a, which, opt):
    NS = opt.ns
    name = f"conv{which}_kernel"
    L = f"c{which}_"
    kernel_header(a, name)
    a("s_cmp_ge_u32 s2, 256")
    a(f"s_cbranch_scc1 {L}end")
    a("s_load_dwordx2 s[4:5], s[0:1], 88")
    if which == 1:
        a("s_load_dwordx4 s[32:35], s[0:1], 48")
    else:
        a("s_load_dwordx2 s[32:33], s[0:1], 0")
        a("s_load_dwordx2 s[34:35], s[0:1], 72")
    a("v_lshrrev_b32 v1, 6, v0")
    a("v_and_b32 v0, 63, v0")
    a("s_and_b32 s24, s2, 7")
    a("s_lshr_b32 s25, s2, 3")
    a("v_readfirstlane_b32 s30, v1")
    a("s_and_b32 s26, s24, 3")
    a("s_lshl_b32 s26, s26, 3")
    a("s_and_b32 s27, s25, 7")
    a("s_add_u32 s26, s26, s27")
    a("s_lshr_b32 s27, s24, 2")
    a("s_lshl_b32 s27, s27, 2")
    a("s_lshr_b32 s28, s25, 3")
    a("s_add_u32 s27, s27, s28")
    a("s_lshr_b32 s28, s26, 4")
    a("s_and_b32 s29, s26, 15")
    a("s_lshl_b32 s29, s29, 2")
    a("v_lshlrev_b32 v2, 4, v0")
    a("s_waitcnt lgkmcnt(0)")
    srd(a, 8, 4, WS_USED)
    if which == 1:
        srd(a, 12, 32, 1024)
        srd(a, 16, 34, 1024)
    else:
        srd(a, 12, 32, X_BYTES)
        srd(a, 16, 34, X_BYTES)
    a("s_cmp_ge_u32 s30, 4")
    a(f"s_cbranch_scc1 {L}loader")

    if opt.prio:
        a(f"s_setprio {opt.prio}")
    ACC = 64
    FR = 128
    vAb, vBb = 4, 5
    vA = [6, 8]
    vB = [7, 9]
    a("s_and_b32 s36, s30, 1")
    a("s_lshr_b32 s37, s30, 1")
    a("v_and_b32 v10, 31, v0")
    a("v_lshrrev_b32 v11, 5, v0")
    if which == 1:
        a("s_lshl_b32 s38, s28, 11")
        a("s_lshl_b32 s39, s27, 8")
        a("s_add_u32 s38, s38, s39")
        a("s_lshl_b32 s39, s37, 7")
        a("s_add_u32 s38, s38, s39")
        a(f"s_add_u32 s38, s38, {EMB_OFF:#x}")
        a("v_lshlrev_b32 v12, 4, v11")
        for i in range(4):
            for j in range(4):
                a(f"buffer_load_dwordx4 {vr(ACC + 16 * i + 4 * j, 4)}, v12, s[8:11], s38 offen offset:{32 * j}")
        a("s_lshl_b32 s39, s27, 7")
        a("s_lshl_b32 s40, s37, 6")
        a("s_add_u32 s39, s39, s40")
        a("v_lshlrev_b32 v13, 3, v11")
        for j in range(4):
            a(f"buffer_load_dwordx2 {vr(200 + 2 * j, 2)}, v13, s[12:15], s39 offen offset:{16 * j}")
            a(f"buffer_load_dwordx2 {vr(208 + 2 * j, 2)}, v13, s[16:19], s39 offen offset:{16 * j}")
    else:
        a("s_lshl_b32 s38, s28, 22")
        a("s_lshl_b32 s39, s27, 19")
        a("s_add_u32 s38, s38, s39")
        a("s_lshl_b32 s39, s37, 18")
        a("s_add_u32 s38, s38, s39")
        a("s_lshl_b32 s39, s29, 7")
        a("s_add_u32 s38, s38, s39")
        a("s_lshl_b32 s39, s36, 6")
        a("s_add_u32 s38, s38, s39")
        a("v_lshlrev_b32 v12, 13, v10")
        a("v_lshlrev_b32 v13, 4, v11")
        a("v_add_u32 v12, v12, v13")
        for i in range(4):
            for jj in range(2):
                a(f"buffer_load_dwordx4 {vr(FR + 8 * i + 4 * jj, 4)}, v12, s[12:15], s38 offen offset:{128 * i + 32 * jj}")
    a(f"v_mul_u32_u24 v{vAb}, {PLANEP}, v11")
    a(f"v_lshlrev_b32 v14, 4, v10")
    a(f"v_add_u32 v{vAb}, v{vAb}, v14")
    a("s_lshl_b32 s39, s36, 9")
    a(f"v_add_u32 v{vAb}, s39, v{vAb}")
    a("s_lshl_b32 s39, s37, 10")
    a(f"s_add_u32 s39, s39, {A_BYTES}")
    a(f"v_add_u32 v{vBb}, s39, v2")
    a(f"v_mov_b32 v{vA[0]}, v{vAb}")
    a(f"v_mov_b32 v{vB[0]}, v{vBb}")
    a(f"v_add_u32 v{vA[1]}, {SLOT}, v{vAb}")
    a(f"v_add_u32 v{vB[1]}, {SLOT}, v{vBb}")
    a(f"s_mov_b32 s40, {2 * SLOT % (NS * SLOT)}")
    a("s_lshl_b32 s39, s30, 6")
    a("v_add_u32 v14, s39, v0")
    a("v_mul_u32_u24 v15, 43, v14")
    a("v_lshrrev_b32 v15, 10, v15")
    a("v_mul_u32_u24 v16, 24, v15")
    a("v_sub_u32 v16, v14, v16")
    a(f"v_mul_u32_u24 v15, {SLOT}, v15")
    a("v_lshrrev_b32 v17, 1, v16")
    a(f"v_mul_u32_u24 v17, {ROWP}, v17")
    a("v_and_b32 v16, 1, v16")
    a("v_mul_u32_u24 v16, 1040, v16")
    a("v_add3_u32 v15, v15, v16, v17")
    for k in range(4):
        a(f"v_mov_b32 v{20 + k}, 0")
    a(f"v_cmp_gt_u32 vcc, {24 * NS}, v14")
    a("s_and_saveexec_b64 s[42:43], vcc")
    a("ds_write_b128 v15, v[20:23]")
    a("s_mov_b64 exec, s[42:43]")
    if which == 2:
        a("s_waitcnt vmcnt(0)")
        for i in range(4):
            for jj in range(2):
                d = FR + 8 * i + 4 * jj
                a(f"v_permlane32_swap_b32 v{d}, v{d + 2}")
                a(f"v_permlane32_swap_b32 v{d + 1}, v{d + 3}")
        a("s_nop 1")
        for i in range(4):
            for jj in range(2):
                d = FR + 8 * i + 4 * jj
                for k in range(4):
                    r = ACC + 16 * i + 8 * jj + 2 * k
                    a(f"v_lshlrev_b32 v{r}, 16, v{d + k}")
                    a(f"v_and_b32 v{r + 1}, 0xffff0000, v{d + k}")
    else:
        a("s_waitcnt vmcnt(0)")
    a("s_waitcnt lgkmcnt(0)")
    a("s_barrier")

    def fA(S, r):
        return FR + 36 * S + 4 * r

    def fB(S, dy):
        return FR + 36 * S + 24 + 4 * dy

    READ_ORDER = [("B", 0), ("A", 0), ("A", 1), ("A", 2), ("A", 3), ("B", 1), ("A", 4), ("B", 2), ("A", 5)]

    def read(S, kind, idx, dx, par):
        if kind == "A":
            return f"ds_read_b128 {vr(fA(S, idx), 4)}, v{vA[par]} offset:{idx * ROWP + dx * 16}"
        return f"ds_read_b128 {vr(fB(S, idx), 4)}, v{vB[par]} offset:{(idx * 3 + dx) * 2048}"

    def mfma(S, dy, i):
        acc = vr(ACC + 16 * i, 16)
        w = vr(fB(S, dy), 4)
        x = vr(fA(S, i + dy), 4)
        if which == 1:
            return f"v_mfma_f32_32x32x16_bf16 {acc}, {w}, {x}, {acc}"
        return f"v_mfma_f32_32x32x16_bf16 {acc}, {x}, {w}, {acc}"

    for kind, idx in READ_ORDER:
        a(read(0, kind, idx, 0, 0))

    st = {"S": 0}

    def group(par, dx, last=False, extra=None):
        S = st["S"]
        N = S ^ 1
        if dx < 2:
            npar, ndx, bar = par, dx + 1, False
        else:
            npar, ndx, bar = par ^ 1, 0, True
        reads = [] if last else [read(N, k, i, ndx, npar) for k, i in READ_ORDER]
        mf = [mfma(S, dy, i) for dy in range(3) for i in range(4)]
        extra = list(extra or [])
        a("s_waitcnt lgkmcnt(0)")
        fill = [[] for _ in range(12)]
        start = 0
        if bar and not last:
            fill[opt.barpos].append("s_barrier")
            start = opt.barpos
        k = start
        per = opt.rpg_bar if bar else opt.rpg
        while reads:
            for _ in range(per):
                if reads:
                    fill[k].append(reads.pop(0))
            k += 1
        k = max(k, 9)
        for e in extra:
            fill[min(k, 11)].append(e)
            k += 1 if k < 11 else 0
        for k in range(12):
            a(mf[k])
            for f in fill[k]:
                a(f)
        st["S"] = N

    def ring_adv(par):
        return [f"v_add_u32 v{vA[par]}, s40, v{vAb}",
                f"v_add_u32 v{vB[par]}, s40, v{vBb}",
                f"s_add_u32 s40, s40, {SLOT}",
                f"s_cmp_eq_u32 s40, {NS * SLOT}",
                f"s_cselect_b32 s40, 0, s40"]

    a("s_mov_b32 s41, 15")
    a.raw(".p2align 3")
    a.label(f"{L}loop")
    for par in range(2):
        group(par, 0)
        group(par, 1, extra=ring_adv(par))
        if par == 1:
            group(par, 2, extra=["s_sub_u32 s41, s41, 1", "s_cmp_lg_u32 s41, 0"])
        else:
            group(par, 2)
    a(f"s_cbranch_scc1 {L}loop")
    for par in range(2):
        group(par, 0)
        group(par, 1)
        group(par, 2, last=(par == 1))
    a("s_nop 15")
    if opt.prio:
        a("s_setprio 0")

    if which == 2:
        for i in range(4):
            for jj in range(2):
                t = FR + 8 * i + 4 * jj
                q = ACC + 16 * i + 8 * jj
                for k in range(4):
                    a(f"v_cvt_pk_bf16_f32 v{t + k}, v{q + 2 * k}, v{q + 2 * k + 1}")
                a("s_nop 1")
                a(f"v_permlane32_swap_b32 v{t}, v{t + 2}")
                a(f"v_permlane32_swap_b32 v{t + 1}, v{t + 3}")
                a(f"buffer_store_dwordx4 {vr(t, 4)}, v12, s[16:19], s38 offen offset:{128 * i + 32 * jj}")
        a("s_endpgm")
    else:
        T = FR
        for k in range(16):
            a(f"v_pk_add_f32 {vr(T + 2 * k, 2)}, {vr(ACC + 4 * k, 2)}, {vr(ACC + 4 * k + 2, 2)}")
        n = 16
        while n > 1:
            n //= 2
            for k in range(n):
                a(f"v_pk_add_f32 {vr(T + 2 * k, 2)}, {vr(T + 2 * k, 2)}, {vr(T + 2 * (k + n), 2)}")
        a(f"v_add_f32 v20, v{T}, v{T + 1}")
        allreduce_add(a, [20], [22])
        a(f"v_mul_f32 v20, {f32bits(-1.0 / 4096):#x}, v20")
        for k in range(4):
            a(f"v_mov_b32 v{24 + 2 * k}, 0")
            a(f"v_mov_b32 v{25 + 2 * k}, 0")
        for k in range(32):
            t = T + 2 * (k % 8)
            ac = 24 + 2 * (k % 4)
            a(f"v_pk_add_f32 {vr(t, 2)}, {vr(ACC + 2 * k, 2)}, v[20:21] op_sel_hi:[1,0]")
            a(f"v_pk_fma_f32 {vr(ac, 2)}, {vr(t, 2)}, {vr(t, 2)}, {vr(ac, 2)}")
        a("v_pk_add_f32 v[24:25], v[24:25], v[26:27]")
        a("v_pk_add_f32 v[28:29], v[28:29], v[30:31]")
        a("v_pk_add_f32 v[24:25], v[24:25], v[28:29]")
        a("v_add_f32 v21, v24, v25")
        allreduce_add(a, [21], [22])
        a("v_sub_f32 v20, 0, v20")
        a("v_mov_b32 v22, 0x7fc00000")
        a("v_cmp_eq_u32 vcc, -1, v20")
        a("v_cmp_eq_u32 s[44:45], -1, v21")
        a("s_nop 1")
        a("v_cndmask_b32 v20, v20, v22, vcc")
        a("v_cndmask_b32 v21, v21, v22, s[44:45]")
        a("s_lshl_b32 s46, s28, 2")
        a("s_lshr_b32 s47, s27, 1")
        a("s_add_u32 s46, s46, s47")
        a("s_lshl_b32 s46, s46, 10")
        a(f"s_add_u32 s46, s46, {ST2_OFF:#x}")
        a("s_and_b32 s47, s27, 1")
        a("s_lshl_b32 s47, s47, 6")
        a("s_add_u32 s47, s47, s29")
        a("s_add_u32 s47, s47, s30")
        a("s_lshl_b32 s47, s47, 3")
        a("s_add_u32 s47, s47, s46")
        a("v_mov_b32 v22, 0")
        a("s_mov_b64 exec, 1")
        a("buffer_store_dwordx2 v[20:21], v22, s[8:11], s47 offen sc0 sc1")
        a("s_mov_b64 exec, -1")
        for j in range(8):
            a(f"v_lshlrev_b32 v{216 + 2 * j}, 16, v{200 + j}")
            a(f"v_and_b32 v{217 + 2 * j}, 0xffff0000, v{200 + j}")
            a(f"v_lshlrev_b32 v{232 + 2 * j}, 16, v{208 + j}")
            a(f"v_and_b32 v{233 + 2 * j}, 0xffff0000, v{208 + j}")
        a("v_lshlrev_b32 v12, 16, v11")
        a("v_lshlrev_b32 v13, 4, v10")
        a("v_add_u32 v12, v12, v13")
        a("s_lshl_b32 s38, s28, 22")
        a("s_lshl_b32 s39, s27, 19")
        a("s_add_u32 s38, s38, s39")
        a("s_lshl_b32 s39, s37, 18")
        a("s_add_u32 s38, s38, s39")
        a("s_lshl_b32 s39, s29, 10")
        a("s_add_u32 s38, s38, s39")
        a("s_lshl_b32 s39, s36, 9")
        a("s_add_u32 s38, s38, s39")
        a(f"s_add_u32 s38, s38, {A2_OFF:#x}")
        a(f"s_add_u32 s39, s38, {2 << 16:#x}")
        a(f"s_mov_b32 s48, {opt.spin}")
        a.label(f"{L}poll")
        a("buffer_load_dwordx4 v[24:27], v2, s[8:11], s46 offen sc0 sc1")
        a("s_waitcnt vmcnt(0)")
        a("v_cmp_eq_u32 vcc, -1, v24")
        a("v_cmp_eq_u32 s[44:45], -1, v25")
        a("v_cmp_eq_u32 s[50:51], -1, v26")
        a("v_cmp_eq_u32 s[52:53], -1, v27")
        a("s_nop 1")
        a("s_or_b64 s[44:45], s[44:45], vcc")
        a("s_or_b64 s[50:51], s[50:51], s[52:53]")
        a("s_or_b64 s[44:45], s[44:45], s[50:51]")
        a(f"s_cbranch_scc0 {L}ready")
        a("s_sleep 1")
        a("s_sub_u32 s48, s48, 1")
        a("s_cmp_lg_u32 s48, 0")
        a(f"s_cbranch_scc1 {L}poll")
        a.label(f"{L}ready")
        combine_stats(a, 24, 20, 21, 22, 23)
        a("v_sub_f32 v20, 0, v20")
        a("v_mov_b32 v22, v21")
        a(f"v_mov_b32 v24, {f32bits(-LOG2E):#x}")
        a("v_mov_b32 v28, 1.0")
        a("v_mov_b32 v29, 1.0")
        for k in range(8):
            a(f"v_pk_mul_f32 {vr(216 + 2 * k, 2)}, {vr(216 + 2 * k, 2)}, v[22:23] op_sel_hi:[1,0]")
        for k in range(8):
            a(f"v_pk_fma_f32 {vr(232 + 2 * k, 2)}, {vr(216 + 2 * k, 2)}, v[20:21], {vr(232 + 2 * k, 2)} op_sel_hi:[1,0,1]")
        E = FR
        OUT = FR + 32
        for i in range(4):
            for h in range(2):
                q = ACC + 16 * i + 8 * h
                e = E + 8 * ((2 * i + h) % 4)
                for k in range(4):
                    a(f"v_pk_fma_f32 {vr(q + 2 * k, 2)}, {vr(q + 2 * k, 2)}, {vr(216 + 8 * h + 2 * k, 2)}, {vr(232 + 8 * h + 2 * k, 2)}")
                for k in range(4):
                    a(f"v_pk_mul_f32 {vr(e + 2 * k, 2)}, {vr(q + 2 * k, 2)}, v[24:25] op_sel_hi:[1,0]")
                for k in range(8):
                    a(f"v_exp_f32 v{e + k}, v{e + k}")
                for k in range(4):
                    a(f"v_pk_add_f32 {vr(e + 2 * k, 2)}, {vr(e + 2 * k, 2)}, v[28:29]")
                for k in range(8):
                    a(f"v_rcp_f32 v{e + k}, v{e + k}")
                for k in range(4):
                    a(f"v_pk_mul_f32 {vr(q + 2 * k, 2)}, {vr(q + 2 * k, 2)}, {vr(e + 2 * k, 2)}")
                t = OUT + 4 * ((2 * i + h) % 8)
                for k in range(4):
                    a(f"v_cvt_pk_bf16_f32 v{t + k}, v{q + 2 * k}, v{q + 2 * k + 1}")
                a("s_nop 1")
                a(f"v_permlane32_swap_b32 v{t}, v{t + 2}")
                a(f"v_permlane32_swap_b32 v{t + 1}, v{t + 3}")
                so = "s38" if h == 0 else "s39"
                a(f"buffer_store_dwordx4 {vr(t, 4)}, v12, s[8:11], {so} offen offset:{1024 * i}")
        a("s_endpgm")

    a.label(f"{L}loader")
    AOFF = A1_OFF if which == 1 else A2_OFF
    WOFF = W1R_OFF if which == 1 else W2R_OFF
    a("s_sub_u32 s30, s30, 4")
    a("s_and_b32 s36, s30, 1")
    a("s_lshr_b32 s37, s30, 1")
    a("s_mul_i32 s38, s37, 3")
    a("s_lshl_b32 s39, s28, 6")
    a("s_add_u32 s39, s39, s36")
    a("s_lshl_b32 s39, s39, 16")
    a(f"s_add_u32 s39, s39, {AOFF:#x}")
    a("s_add_u32 s40, s29, s38")
    for k in range(3):
        a(f"s_add_u32 s41, s40, {k - 1 & 0xffffffff:#x}")
        a("s_lshl_b32 s42, s41, 10")
        a("s_add_u32 s42, s42, s39")
        a("s_cmp_lt_u32 s41, 64")
        a(f"s_cselect_b32 s{44 + k}, s42, {OOB:#x}")
    a(f"s_mul_i32 s47, s36, {PLANEP}")
    a(f"s_mul_i32 s42, s38, {ROWP}")
    a("s_add_u32 s47, s47, s42")
    a("s_add_u32 s47, s47, 16")
    a("s_mul_i32 s48, s30, 5")
    a("s_min_u32 s48, s48, 14")
    a("s_lshl_b32 s48, s48, 10")
    a(f"s_mul_i32 s49, s27, {32 * B_BYTES}")
    a("s_add_u32 s49, s49, s48")
    a(f"s_add_u32 s49, s49, {WOFF:#x}")
    a(f"s_add_u32 s48, s48, {A_BYTES}")
    a("v_add_u32 v3, 4096, v2")
    a("s_mov_b32 s50, 0")
    a("s_cmp_ge_u32 s30, 2")
    a(f"s_cbranch_scc1 {L}ld7")

    for nb in (5, 4):
        n = 3 + nb
        LL = f"{L}ld{n}"
        a.label(LL)

        def issue():
            a("s_add_u32 s51, s50, s48")
            a("s_mov_b32 m0, s51")
            a("s_add_u32 s52, s50, s47")
            for k in range(4):
                a(f"buffer_load_dwordx4 v2, s[8:11], s49 offen offset:{1024 * k} lds")
            if nb == 5:
                a("s_add_u32 m0, s51, 4096")
                a("s_nop 0")
                a("buffer_load_dwordx4 v3, s[8:11], s49 offen lds")
            for k in range(3):
                a(f"s_add_u32 m0, s52, {k * ROWP}")
                a("s_nop 0")
                a(f"buffer_load_dwordx4 v2, s[8:11], s{44 + k} offen lds")
                a(f"s_add_u32 s{44 + k}, s{44 + k}, {2 << 16:#x}")
            a(f"s_add_u32 s49, s49, {B_BYTES}")
            a(f"s_add_u32 s50, s50, {SLOT}")
            a(f"s_cmp_eq_u32 s50, {NS * SLOT}")
            a("s_cselect_b32 s50, 0, s50")

        for s in range(NS):
            issue()
        a(f"s_waitcnt vmcnt({(NS - 1) * n})")
        a("s_barrier")
        a(f"s_mov_b32 s53, {32 - NS}")
        a.label(f"{LL}_loop")
        a(f"s_waitcnt vmcnt({(NS - 2) * n})")
        a("s_barrier")
        issue()
        a("s_sub_u32 s53, s53, 1")
        a("s_cmp_lg_u32 s53, 0")
        a(f"s_cbranch_scc1 {LL}_loop")
        for s in range(32 - NS, 31):
            a(f"s_waitcnt vmcnt({(31 - (s + 1)) * n})")
            a("s_barrier")
        a("s_endpgm")
    a.label(f"{L}end")
    a("s_endpgm")
    return name, 256, 512, NS * SLOT, kernel_desc(name, 256 if which == 1 else 200, 64)


HEADER = open("standalone__adm_resblock__diffusion.s.ref").read().split("; Override")[0]


def main():
    ap = argparse.ArgumentParser()
    ap.add_argument("-o", default="standalone__adm_resblock__diffusion.s")
    ap.add_argument("--ns", type=int, default=5)
    ap.add_argument("--prio", type=int, default=0)
    ap.add_argument("--barpos", type=int, default=0)
    ap.add_argument("--rpg", type=int, default=1)
    ap.add_argument("--rpg_bar", type=int, default=1)
    ap.add_argument("--spin", type=int, default=200000)
    opt = ap.parse_args()
    a = Asm()
    ks = []
    ks.append(gen_prep(a, opt))
    ks.append(gen_xform(a, opt))
    ks.append(gen_conv(a, 1, opt))
    ks.append(gen_conv(a, 2, opt))
    out = HEADER
    for name, g, blk, lds, _ in ks:
        out += f"; @launch kernel={name} grid=({g},1,1) block=({blk},1,1) lds={lds}\n"
    out += '.amdgcn_target "amdgcn-amd-amdhsa--gfx950"\n.text\n'
    out += a.text()
    out += '.section .rodata,"a"\n'
    for k in ks:
        out += k[4]
    open(opt.o, "w").write(out)


if __name__ == "__main__":
    main()
```

```python
import sys, argparse

A1_OFF = 0x0000000
A2_OFF = 0x0800000
W1R_OFF = 0x1000000
W2R_OFF = 0x1800000
ST1_OFF = 0x2000000
ST2_OFF = 0x2002000
EMB_OFF = 0x2004000
DBG_OFF = 0x2100000
WS_USED = 0x2200000
OOB = 0x80000000
SENT = 0xFFFFFFFF

X_BYTES = 2 * 512 * 64 * 64 * 2
W_BYTES = 512 * 512 * 9 * 2

ROWP = 1056
PLANEP = 6 * ROWP
A_BYTES = 2 * PLANEP
B_BYTES = 18 * 1024
SLOT = A_BYTES + B_BYTES

LOG2E = 1.4426950408889634


def f32bits(x):
    import struct
    return struct.unpack("<I", struct.pack("<f", x))[0]


class Asm:
    def __init__(self):
        self.lines = []

    def __call__(self, s):
        self.lines.append("    " + s)

    def label(self, l):
        self.lines.append(l + ":")

    def raw(self, s):
        self.lines.append(s)

    def text(self):
        return "\n".join(self.lines) + "\n"


def vr(b, n=1):
    return f"v{b}" if n == 1 else f"v[{b}:{b + n - 1}]"


def sr(b, n=1):
    return f"s{b}" if n == 1 else f"s[{b}:{b + n - 1}]"


def srd(a, d, base, nbytes):
    a(f"s_mov_b32 s{d}, s{base}")
    a(f"s_and_b32 s{d + 1}, s{base + 1}, 0xffff")
    a(f"s_mov_b32 s{d + 2}, {nbytes:#x}")
    a(f"s_mov_b32 s{d + 3}, 0x20000")


def allreduce_add(a, regs, tmps):
    steps = ["quad_perm:[1,0,3,2]", "quad_perm:[2,3,0,1]", "row_half_mirror", "row_mirror"]
    n = len(regs)
    pad = max(0, 3 - n)
    for st in steps:
        if pad:
            a(f"s_nop {pad - 1 if pad > 0 else 0}")
        for r in regs:
            a(f"v_add_f32_dpp v{r}, v{r}, v{r} {st} row_mask:0xf bank_mask:0xf")
    for sw in ("v_permlane16_swap_b32", "v_permlane32_swap_b32"):
        for r, t in zip(regs, tmps):
            a(f"v_mov_b32 v{t}, v{r}")
        a("s_nop 1")
        for r, t in zip(regs, tmps):
            a(f"{sw} v{r}, v{t}")
        a("s_nop 1")
        for r, t in zip(regs, tmps):
            a(f"v_add_f32 v{r}, v{r}, v{t}")


def kernel_header(a, name):
    a.raw(f".globl {name}")
    a.raw(".p2align 8")
    a.raw(f".type {name},@function")
    a.label(name)


def kernel_desc(name, vgpr, sgpr=102, accum=None):
    if accum is None:
        accum = (vgpr + 3) // 4 * 4
    return f""".p2align 6
.amdhsa_kernel {name}
  .amdhsa_next_free_vgpr {vgpr}
  .amdhsa_next_free_sgpr {sgpr}
  .amdhsa_accum_offset {accum}
  .amdhsa_group_segment_fixed_size 0
  .amdhsa_kernarg_size 96
  .amdhsa_user_sgpr_count 2
  .amdhsa_user_sgpr_kernarg_segment_ptr 1
  .amdhsa_system_sgpr_workgroup_id_x 1
  .amdhsa_float_denorm_mode_32 3
.end_amdhsa_kernel
"""


def combine_stats(a, p, mean, rstd, t0, t1):
    a(f"v_add_f32 v{mean}, v{p}, v{p + 2}")
    allreduce_add(a, [mean], [t0])
    a(f"v_mul_f32 v{mean}, {f32bits(1.0 / 128):#x}, v{mean}")
    a(f"v_sub_f32 v{p}, v{p}, v{mean}")
    a(f"v_sub_f32 v{p + 2}, v{p + 2}, v{mean}")
    a(f"v_mul_f32 v{t1}, v{p}, v{p}")
    a(f"v_fmac_f32 v{t1}, v{p + 2}, v{p + 2}")
    a(f"v_add_f32 v{rstd}, v{p + 1}, v{p + 3}")
    a(f"v_fmac_f32 v{rstd}, {f32bits(4096.0):#x}, v{t1}")
    allreduce_add(a, [rstd], [t0])
    a(f"v_mov_b32 v{t0}, {f32bits(1e-5):#x}")
    a(f"v_fmac_f32 v{t0}, {f32bits(1.0 / 524288):#x}, v{rstd}")
    a(f"v_rsq_f32 v{rstd}, v{t0}")
    a("s_nop 0")
    a(f"v_mul_f32 v{t1}, v{t0}, v{rstd}")
    a(f"v_mul_f32 v{t1}, v{t1}, v{rstd}")
    a(f"v_mov_b32 v{t0}, {f32bits(1.5):#x}")
    a(f"v_fmac_f32 v{t0}, -0.5, v{t1}")
    a(f"v_mul_f32 v{rstd}, v{rstd}, v{t0}")


def gen_prep(a, opt):
    name = "prep_kernel"
    kernel_header(a, name)
    NW = 256 + 32
    a(f"s_cmp_ge_u32 s2, {NW}")
    a("s_cbranch_scc1 prep_end")
    a("s_load_dwordx4 s[4:7], s[0:1], 0")
    a("s_load_dwordx4 s[8:11], s[0:1], 32")
    a("s_load_dwordx2 s[12:13], s[0:1], 64")
    a("s_load_dwordx2 s[14:15], s[0:1], 88")
    a("v_lshrrev_b32 v1, 6, v0")
    a("v_and_b32 v0, 63, v0")
    a("s_nop 0")
    a("v_readfirstlane_b32 s3, v1")
    a("s_waitcnt lgkmcnt(0)")
    srd(a, 16, 4, X_BYTES)
    srd(a, 20, 14, WS_USED)
    srd(a, 28, 6, 2 * 768 * 2)
    srd(a, 32, 10, 768 * 512 * 2)
    a("s_lshl_b32 s36, s2, 2")
    a("s_add_u32 s36, s36, s3")
    a("s_cmp_ge_u32 s36, 512")
    a("s_cselect_b32 s24, s12, s8")
    a("s_cselect_b32 s25, s13, s9")
    a(f"s_mov_b32 s40, {W1R_OFF:#x}")
    a(f"s_cselect_b32 s40, {W2R_OFF:#x}, s40")
    a("s_and_b32 s25, s25, 0xffff")
    a(f"s_mov_b32 s26, {W_BYTES:#x}")
    a("s_mov_b32 s27, 0x20000")
    a("s_cmp_ge_u32 s2, 256")
    a("s_cbranch_scc1 prep_emb")
    a("v_lshlrev_b32 v2, 4, v0")
    a("s_lshl_b32 s37, s36, 13")
    a("s_add_u32 s38, s37, 4096")
    X = 8
    for j in range(8):
        so = "s37" if j < 4 else "s38"
        a(f"buffer_load_dwordx4 {vr(X + 4 * j, 4)}, v2, s[16:19], {so} offen offset:{(j % 4) * 1024}")
    a("v_and_b32 v3, 31, v0")
    a("v_lshrrev_b32 v4, 5, v0")
    a("v_mul_u32_u24 v3, 9216, v3")
    a("v_mul_u32_u24 v4, 144, v4")
    a("v_add_u32 v3, v3, v4")
    a("s_lshr_b32 s41, s36, 5")
    a("s_and_b32 s41, s41, 15")
    a("s_and_b32 s42, s36, 31")
    a(f"s_mul_i32 s43, s41, {32 * 9216}")
    a("s_mul_i32 s44, s42, 288")
    a("s_add_u32 s43, s43, s44")
    Wd = 40
    for k in range(9):
        a(f"buffer_load_dwordx4 {vr(Wd + 4 * k, 4)}, v3, s[24:27], s43 offen offset:{16 * k}")
    a("s_lshr_b32 s45, s41, 1")
    a("s_lshl_b32 s45, s45, 5")
    a("s_add_u32 s45, s45, s42")
    a("s_mul_i32 s45, s45, 18432")
    a("s_and_b32 s46, s41, 1")
    a("s_lshl_b32 s46, s46, 10")
    a("s_add_u32 s45, s45, s46")
    a("s_add_u32 s45, s45, s40")
    a("s_mov_b32 s47, 0x3f803f80")
    a("v_mov_b32 v4, 0")
    a("v_mov_b32 v5, 0")
    a("s_waitcnt vmcnt(9)")
    for j in range(32):
        a(f"v_dot2_f32_bf16 v{4 + (j & 1)}, v{X + j}, s47, v{4 + (j & 1)}")
    a("s_nop 2")
    a("v_add_f32 v4, v4, v5")
    allreduce_add(a, [4], [5])
    a(f"v_mul_f32 v4, {f32bits(-1.0 / 4096):#x}, v4")
    a("v_mov_b32 v80, 0")
    a("v_mov_b32 v81, 0")
    a("v_mov_b32 v82, 0")
    a("v_mov_b32 v83, 0")
    for j in range(32):
        t = 84 + 2 * (j & 3)
        acc = 80 + 2 * (j & 1)
        a(f"v_lshlrev_b32 v{t}, 16, v{X + j}")
        a(f"v_and_b32 v{t + 1}, 0xffff0000, v{X + j}")
        a(f"v_pk_add_f32 {vr(t, 2)}, {vr(t, 2)}, v[4:5] op_sel_hi:[1,0]")
        a(f"v_pk_fma_f32 {vr(acc, 2)}, {vr(t, 2)}, {vr(t, 2)}, {vr(acc, 2)}")
    a("v_pk_add_f32 v[80:81], v[80:81], v[82:83]")
    a("v_add_f32 v5, v80, v81")
    allreduce_add(a, [5], [6])
    a("v_sub_f32 v4, 0, v4")
    a(f"v_mov_b32 v6, {SENT:#x}")
    a(f"v_mov_b32 v7, {SENT:#x}")
    a("v_mov_b32 v80, 0")
    a("s_lshl_b32 s48, s36, 3")
    a(f"s_add_u32 s49, s48, {ST1_OFF:#x}")
    a(f"s_add_u32 s48, s48, {ST2_OFF:#x}")
    a("s_mov_b64 exec, 1")
    a("buffer_store_dwordx2 v[4:5], v80, s[20:23], s49 offen")
    a("buffer_store_dwordx2 v[6:7], v80, s[20:23], s48 offen")
    a("s_mov_b64 exec, -1")
    a("s_mov_b32 s50, 0x07060100")
    a("s_mov_b32 s51, 0x05040302")
    a("s_waitcnt vmcnt(2)")
    O = 84
    for t in range(9):
        ob = O + 4 * (t % 3)
        for j in range(4):
            e1 = 18 * j + t
            e2 = e1 + 9
            sel = "s50" if t % 2 == 0 else "s51"
            a(f"v_perm_b32 v{ob + j}, v{Wd + e2 // 2}, v{Wd + e1 // 2}, {sel}")
        if t % 2 == 0:
            a(f"buffer_store_dwordx4 {vr(ob, 4)}, v2, s[20:23], s45 offen")
        else:
            a(f"buffer_store_dwordx4 {vr(ob, 4)}, v2, s[20:23], s45 offen offset:2048")
            a("s_add_u32 s45, s45, 4096")
    a("s_endpgm")

    a.label("prep_emb")
    a("s_sub_u32 s36, s2, 256")
    a("v_lshrrev_b32 v2, 1, v0")
    a("s_mul_i32 s37, s3, 192")
    a("v_add_u32 v2, s37, v2")
    a("v_lshlrev_b32 v3, 10, v2")
    a("v_and_b32 v4, 1, v0")
    a("v_lshlrev_b32 v4, 4, v4")
    a("v_add_u32 v3, v3, v4")
    a("s_lshl_b32 s38, s36, 5")
    Wm = 8
    for p in range(6):
        a(f"buffer_load_dwordx4 {vr(Wm + 4 * p, 4)}, v3, s[32:35], s38 offen")
        if p < 5:
            a("s_add_u32 s38, s38, 32768")
    a("v_lshlrev_b32 v5, 1, v2")
    T = 32
    for b in range(2):
        for p in range(6):
            a(f"buffer_load_ushort v{T + b * 6 + p}, v5, s[28:31], 0 offen offset:{b * 1536 + p * 64}")
    ACC = 48
    for i in range(16):
        a(f"v_mov_b32 v{ACC + i}, 0")
    a("s_waitcnt vmcnt(0)")
    for i in range(12):
        a(f"v_lshlrev_b32 v{T + i}, 16, v{T + i}")
    for i in range(12):
        a(f"v_mul_f32 v{64 + i}, {f32bits(-LOG2E):#x}, v{T + i}")
    for i in range(12):
        a(f"v_exp_f32 v{64 + i}, v{64 + i}")
    for i in range(12):
        a(f"v_add_f32 v{64 + i}, 1.0, v{64 + i}")
    for i in range(12):
        a(f"v_rcp_f32 v{64 + i}, v{64 + i}")
    for i in range(12):
        a(f"v_mul_f32 v{T + i}, v{T + i}, v{64 + i}")
    for p in range(6):
        for d in range(4):
            a(f"v_lshlrev_b32 v{64 + 2 * d}, 16, v{Wm + 4 * p + d}")
            a(f"v_and_b32 v{65 + 2 * d}, 0xffff0000, v{Wm + 4 * p + d}")
        for b in range(2):
            for c in range(8):
                a(f"v_fmac_f32 v{ACC + b * 8 + c}, v{T + b * 6 + p}, v{64 + c}")
    regs = [ACC + i for i in range(16)]
    for st in ("quad_perm:[2,3,0,1]", "row_ror:4", "row_ror:8"):
        for r in regs:
            a(f"v_add_f32_dpp v{r}, v{r}, v{r} {st} row_mask:0xf bank_mask:0xf")
    for sw in ("v_permlane16_swap_b32", "v_permlane32_swap_b32"):
        for r in regs:
            a(f"v_mov_b32 v{r + 16}, v{r}")
        for r in regs:
            a(f"{sw} v{r}, v{r + 16}")
        for r in regs:
            a(f"v_add_f32 v{r}, v{r}, v{r + 16}")
    a("v_lshlrev_b32 v4, 1, v4")
    a("s_lshl_b32 s39, s3, 7")
    a("v_add_u32 v4, s39, v4")
    a("s_mov_b64 exec, 3")
    a(f"ds_write_b128 v4, {vr(ACC, 4)}")
    a(f"ds_write_b128 v4, {vr(ACC + 4, 4)} offset:16")
    a(f"ds_write_b128 v4, {vr(ACC + 8, 4)} offset:64")
    a(f"ds_write_b128 v4, {vr(ACC + 12, 4)} offset:80")
    a("s_mov_b64 exec, -1")
    a("s_waitcnt lgkmcnt(0)")
    a("s_barrier")
    a("s_cmp_lg_u32 s3, 0")
    a("s_cbranch_scc1 prep_end")
    a("v_and_b32 v5, 31, v0")
    a("v_lshlrev_b32 v5, 2, v5")
    for w in range(4):
        a(f"ds_read_b32 v{8 + w}, v5 offset:{w * 128}")
    a("v_and_b32 v6, 15, v0")
    a("v_lshlrev_b32 v6, 2, v6")
    a("v_and_b32 v7, 16, v0")
    a("v_lshlrev_b32 v7, 7, v7")
    a("v_add_u32 v6, v6, v7")
    a("s_lshl_b32 s39, s36, 6")
    a(f"s_add_u32 s39, s39, {EMB_OFF:#x}")
    a("s_waitcnt lgkmcnt(0)")
    a("v_add_f32 v8, v8, v9")
    a("v_add_f32 v10, v10, v11")
    a("v_add_f32 v8, v8, v10")
    a("s_mov_b32 exec_hi, 0")
    a("buffer_store_dword v8, v6, s[20:23], s39 offen")
    a.label("prep_end")
    a("s_endpgm")
    return name, NW, 256, 512, kernel_desc(name, 96, 64)


def gen_xform(a, opt):
    name = "xform_kernel"
    kernel_header(a, name)
    NW = 512
    a(f"s_cmp_ge_u32 s2, {NW}")
    a("s_cbranch_scc1 xform_end")
    a("s_load_dwordx2 s[4:5], s[0:1], 0")
    a("s_load_dwordx4 s[8:11], s[0:1], 16")
    a("s_load_dwordx2 s[14:15], s[0:1], 88")
    a("v_lshrrev_b32 v1, 6, v0")
    a("v_and_b32 v0, 63, v0")
    a("s_nop 0")
    a("v_readfirstlane_b32 s3, v1")
    a("s_lshl_b32 s36, s2, 2")
    a("s_nop 2")
    a("s_add_u32 s36, s36, s3")
    a("s_lshr_b32 s37, s36, 4")
    a("s_and_b32 s38, s36, 15")
    a("s_and_b32 s39, s37, 63")
    a("s_lshl_b32 s39, s39, 4")
    a("s_waitcnt lgkmcnt(0)")
    a("s_add_u32 s8, s8, s39")
    a("s_addc_u32 s9, s9, 0")
    a("s_add_u32 s10, s10, s39")
    a("s_addc_u32 s11, s11, 0")
    a("s_load_dwordx4 s[40:43], s[8:9], 0")
    a("s_load_dwordx4 s[44:47], s[10:11], 0")
    srd(a, 16, 4, X_BYTES)
    srd(a, 20, 14, WS_USED)
    a("v_lshlrev_b32 v2, 4, v0")
    a("s_lshr_b32 s48, s37, 4")
    a("s_lshl_b32 s48, s48, 10")
    a(f"s_add_u32 s48, s48, {ST1_OFF:#x}")
    a("buffer_load_dwordx4 v[4:7], v2, s[20:23], s48 offen")
    a("v_lshlrev_b32 v3, 3, v0")
    a("s_lshl_b32 s49, s37, 16")
    a("s_lshl_b32 s50, s38, 9")
    a("s_add_u32 s49, s49, s50")
    X = 16
    for c in range(8):
        a(f"buffer_load_dwordx2 {vr(X + 2 * c, 2)}, v3, s[16:19], s49 offen")
        if c < 7:
            a("s_add_u32 s49, s49, 8192")
    a("v_lshlrev_b32 v12, 6, v0")
    a("s_lshl_b32 s51, s36, 12")
    a("s_waitcnt vmcnt(8)")
    combine_stats(a, 4, 8, 9, 10, 11)
    a("s_waitcnt lgkmcnt(0)")
    for c in range(8):
        g = 40 + c // 2
        b = 44 + c // 2
        if c % 2 == 0:
            a(f"s_lshl_b32 s52, s{g}, 16")
            a(f"s_lshl_b32 s53, s{b}, 16")
        else:
            a(f"s_and_b32 s52, s{g}, 0xffff0000")
            a(f"s_and_b32 s53, s{b}, 0xffff0000")
        P = 32 + 4 * c
        a(f"v_mul_f32 v{P}, s52, v9")
        a(f"v_mov_b32 v{P + 1}, s53")
        a(f"v_fma_f32 v{P + 1}, -v8, v{P}, v{P + 1}")
        a(f"v_mul_f32 v{P + 2}, {f32bits(-LOG2E):#x}, v{P}")
        a(f"v_mul_f32 v{P + 3}, {f32bits(-LOG2E):#x}, v{P + 1}")
    Y = 64
    E = 96
    a("v_mov_b32 v10, 1.0")
    a("v_mov_b32 v11, 1.0")
    for c in range(8):
        a(f"s_waitcnt vmcnt({7 - c})")
        P = 32 + 4 * c
        y = Y + 4 * c
        e = E + 4 * (c & 1)
        for d in range(2):
            a(f"v_lshlrev_b32 v{y + 2 * d}, 16, v{X + 2 * c + d}")
            a(f"v_and_b32 v{y + 2 * d + 1}, 0xffff0000, v{X + 2 * c + d}")
        for d in range(2):
            a(f"v_pk_fma_f32 {vr(e + 2 * d, 2)}, {vr(y + 2 * d, 2)}, {vr(P + 2, 2)}, {vr(P + 2, 2)} op_sel:[0,0,1] op_sel_hi:[1,0,1]")
        for d in range(2):
            a(f"v_pk_fma_f32 {vr(y + 2 * d, 2)}, {vr(y + 2 * d, 2)}, {vr(P, 2)}, {vr(P, 2)} op_sel:[0,0,1] op_sel_hi:[1,0,1]")
        for k in range(4):
            a(f"v_exp_f32 v{e + k}, v{e + k}")
        a("s_nop 0")
        for d in range(2):
            a(f"v_pk_add_f32 {vr(e + 2 * d, 2)}, {vr(e + 2 * d, 2)}, v[10:11]")
        for k in range(4):
            a(f"v_rcp_f32 v{e + k}, v{e + k}")
        a("s_nop 0")
        for d in range(2):
            a(f"v_pk_mul_f32 {vr(y + 2 * d, 2)}, {vr(y + 2 * d, 2)}, {vr(e + 2 * d, 2)}")
    O = 104
    for px in range(4):
        for j in range(4):
            a(f"v_cvt_pk_bf16_f32 v{O + 4 * px + j}, v{Y + 8 * j + px}, v{Y + 8 * j + 4 + px}")
        a(f"buffer_store_dwordx4 {vr(O + 4 * px, 4)}, v12, s[20:23], s51 offen offset:{16 * px}")
    a.label("xform_end")
    a("s_endpgm")
    return name, NW, 256, 0, kernel_desc(name, 120, 64)


def gen_conv(a, which, opt):
    NS = opt.ns
    name = f"conv{which}_kernel"
    L = f"c{which}_"
    kernel_header(a, name)
    a("s_cmp_ge_u32 s2, 256")
    a(f"s_cbranch_scc1 {L}end")
    if opt.diag:
        a("s_memtime s[64:65]")
        a("s_memrealtime s[66:67]")
    a("s_load_dwordx2 s[4:5], s[0:1], 88")
    if which == 1:
        a("s_load_dwordx4 s[32:35], s[0:1], 48")
    else:
        a("s_load_dwordx2 s[32:33], s[0:1], 0")
        a("s_load_dwordx2 s[34:35], s[0:1], 72")
    a("v_lshrrev_b32 v1, 6, v0")
    a("v_and_b32 v0, 63, v0")
    a("s_and_b32 s24, s2, 7")
    a("s_lshr_b32 s25, s2, 3")
    a("v_readfirstlane_b32 s30, v1")
    a("s_and_b32 s26, s24, 3")
    a("s_lshl_b32 s26, s26, 3")
    a("s_and_b32 s27, s25, 7")
    a("s_add_u32 s26, s26, s27")
    a("s_lshr_b32 s27, s24, 2")
    a("s_lshl_b32 s27, s27, 2")
    a("s_lshr_b32 s28, s25, 3")
    a("s_add_u32 s27, s27, s28")
    a("s_lshr_b32 s28, s26, 4")
    a("s_and_b32 s29, s26, 15")
    a("s_lshl_b32 s29, s29, 2")
    a("v_lshlrev_b32 v2, 4, v0")
    a("s_waitcnt lgkmcnt(0)")
    srd(a, 8, 4, WS_USED)
    if which == 1:
        srd(a, 12, 32, 1024)
        srd(a, 16, 34, 1024)
    else:
        srd(a, 12, 32, X_BYTES)
        srd(a, 16, 34, X_BYTES)
    a("s_cmp_ge_u32 s30, 4")
    a(f"s_cbranch_scc1 {L}loader")

    if opt.prio:
        a(f"s_setprio {opt.prio}")
    ACC = 64
    FR = 128
    vAb, vBb = 4, 5
    vA = [6, 8]
    vB = [7, 9]
    a("s_and_b32 s36, s30, 1")
    a("s_lshr_b32 s37, s30, 1")
    a("v_and_b32 v10, 31, v0")
    a("v_lshrrev_b32 v11, 5, v0")
    if which == 1:
        a("s_lshl_b32 s38, s28, 11")
        a("s_lshl_b32 s39, s27, 8")
        a("s_add_u32 s38, s38, s39")
        a("s_lshl_b32 s39, s37, 7")
        a("s_add_u32 s38, s38, s39")
        a(f"s_add_u32 s38, s38, {EMB_OFF:#x}")
        a("v_lshlrev_b32 v12, 4, v11")
        for i in range(4):
            for j in range(4):
                a(f"buffer_load_dwordx4 {vr(ACC + 16 * i + 4 * j, 4)}, v12, s[8:11], s38 offen offset:{32 * j}")
        a("s_lshl_b32 s39, s27, 7")
        a("s_lshl_b32 s40, s37, 6")
        a("s_add_u32 s39, s39, s40")
        a("v_lshlrev_b32 v13, 3, v11")
        for j in range(4):
            a(f"buffer_load_dwordx2 {vr(200 + 2 * j, 2)}, v13, s[12:15], s39 offen offset:{16 * j}")
            a(f"buffer_load_dwordx2 {vr(208 + 2 * j, 2)}, v13, s[16:19], s39 offen offset:{16 * j}")
    else:
        a("s_lshl_b32 s38, s28, 22")
        a("s_lshl_b32 s39, s27, 19")
        a("s_add_u32 s38, s38, s39")
        a("s_lshl_b32 s39, s37, 18")
        a("s_add_u32 s38, s38, s39")
        a("s_lshl_b32 s39, s29, 7")
        a("s_add_u32 s38, s38, s39")
        a("s_lshl_b32 s39, s36, 6")
        a("s_add_u32 s38, s38, s39")
        a("v_lshlrev_b32 v12, 13, v10")
        a("v_lshlrev_b32 v13, 4, v11")
        a("v_add_u32 v12, v12, v13")
        for i in range(4):
            for jj in range(2):
                a(f"buffer_load_dwordx4 {vr(FR + 8 * i + 4 * jj, 4)}, v12, s[12:15], s38 offen offset:{128 * i + 32 * jj}")
    a(f"v_mul_u32_u24 v{vAb}, {PLANEP}, v11")
    a(f"v_lshlrev_b32 v14, 4, v10")
    a(f"v_add_u32 v{vAb}, v{vAb}, v14")
    a("s_lshl_b32 s39, s36, 9")
    a(f"v_add_u32 v{vAb}, s39, v{vAb}")
    a("s_lshl_b32 s39, s37, 10")
    a(f"s_add_u32 s39, s39, {A_BYTES}")
    a(f"v_add_u32 v{vBb}, s39, v2")
    a(f"v_mov_b32 v{vA[0]}, v{vAb}")
    a(f"v_mov_b32 v{vB[0]}, v{vBb}")
    a(f"v_add_u32 v{vA[1]}, {SLOT}, v{vAb}")
    a(f"v_add_u32 v{vB[1]}, {SLOT}, v{vBb}")
    a(f"s_mov_b32 s40, {2 * SLOT % (NS * SLOT)}")
    a("s_lshl_b32 s39, s30, 6")
    a("v_add_u32 v14, s39, v0")
    a("v_mul_u32_u24 v15, 43, v14")
    a("v_lshrrev_b32 v15, 10, v15")
    a("v_mul_u32_u24 v16, 24, v15")
    a("v_sub_u32 v16, v14, v16")
    a(f"v_mul_u32_u24 v15, {SLOT}, v15")
    a("v_lshrrev_b32 v17, 1, v16")
    a(f"v_mul_u32_u24 v17, {ROWP}, v17")
    a("v_and_b32 v16, 1, v16")
    a("v_mul_u32_u24 v16, 1040, v16")
    a("v_add3_u32 v15, v15, v16, v17")
    for k in range(4):
        a(f"v_mov_b32 v{20 + k}, 0")
    a(f"v_cmp_gt_u32 vcc, {24 * NS}, v14")
    a("s_and_saveexec_b64 s[42:43], vcc")
    a("ds_write_b128 v15, v[20:23]")
    a("s_mov_b64 exec, s[42:43]")
    if which == 2:
        a("s_waitcnt vmcnt(0)")
        for i in range(4):
            for jj in range(2):
                d = FR + 8 * i + 4 * jj
                a(f"v_permlane32_swap_b32 v{d}, v{d + 2}")
                a(f"v_permlane32_swap_b32 v{d + 1}, v{d + 3}")
        a("s_nop 1")
        for i in range(4):
            for jj in range(2):
                d = FR + 8 * i + 4 * jj
                for k in range(4):
                    r = ACC + 16 * i + 8 * jj + 2 * k
                    a(f"v_lshlrev_b32 v{r}, 16, v{d + k}")
                    a(f"v_and_b32 v{r + 1}, 0xffff0000, v{d + k}")
    else:
        a("s_waitcnt vmcnt(0)")
    a("s_waitcnt lgkmcnt(0)")
    a("s_barrier")
    if opt.diag:
        a("s_memtime s[68:69]")
        a("s_memrealtime s[80:81]")
        a("s_waitcnt lgkmcnt(0)")

    def diag_out():
        if not opt.diag:
            return
        a("s_waitcnt vmcnt(0)")
        a("s_memtime s[74:75]")
        a("s_memrealtime s[76:77]")
        a("s_getreg_b32 s78, hwreg(HW_REG_HW_ID)")
        a("s_getreg_b32 s79, hwreg(HW_REG_XCC_ID)")
        a("s_waitcnt lgkmcnt(0)")
        for k in range(24):
            a(f"v_mov_b32 v{32 + k}, s{64 + k}")
        a("s_lshl_b32 s54, s2, 2")
        a("s_add_u32 s54, s54, s30")
        a("s_lshl_b32 s54, s54, 7")
        a(f"s_add_u32 s54, s54, {DBG_OFF + (which - 1) * 131072:#x}")
        a("v_mov_b32 v60, 0")
        a("s_mov_b64 exec, 1")
        for k in range(6):
            a(f"buffer_store_dwordx4 {vr(32 + 4 * k, 4)}, v60, s[8:11], s54 offen offset:{16 * k}")

    def fA(S, r):
        return FR + 36 * S + 4 * r

    def fB(S, dy):
        return FR + 36 * S + 24 + 4 * dy

    READ_ORDER = [("B", 0), ("A", 0), ("A", 1), ("A", 2), ("A", 3), ("B", 1), ("A", 4), ("B", 2), ("A", 5)]

    def read(S, kind, idx, dx, par):
        if kind == "A":
            return f"ds_read_b128 {vr(fA(S, idx), 4)}, v{vA[par]} offset:{idx * ROWP + dx * 16}"
        return f"ds_read_b128 {vr(fB(S, idx), 4)}, v{vB[par]} offset:{(idx * 3 + dx) * 2048}"

    def mfma(S, dy, i):
        acc = vr(ACC + 16 * i, 16)
        w = vr(fB(S, dy), 4)
        x = vr(fA(S, i + dy), 4)
        if which == 1:
            return f"v_mfma_f32_32x32x16_bf16 {acc}, {w}, {x}, {acc}"
        return f"v_mfma_f32_32x32x16_bf16 {acc}, {x}, {w}, {acc}"

    for kind, idx in READ_ORDER:
        a(read(0, kind, idx, 0, 0))

    st = {"S": 0}

    def group(par, dx, last=False, extra=None):
        S = st["S"]
        N = S ^ 1
        if dx < 2:
            npar, ndx, bar = par, dx + 1, False
        else:
            npar, ndx, bar = par ^ 1, 0, True
        reads = [] if last else [read(N, k, i, ndx, npar) for k, i in READ_ORDER]
        if opt.order == 0:
            mf = [mfma(S, dy, i) for dy in range(3) for i in range(4)]
        elif opt.order == 1:
            mf = [mfma(S, dy, i) for i in range(4) for dy in range(3)]
        else:
            mf = [mfma(S, r - i, i) for r in range(6) for i in range(4) if 0 <= r - i <= 2]
        if opt.noread:
            reads = []
        if opt.nomfma:
            mf = ["s_nop 0"] * 12
        extra = list(extra or [])
        a("s_waitcnt lgkmcnt(0)")
        fill = [[] for _ in range(12)]
        start = 0
        if bar and not last:
            fill[opt.barpos].append("s_barrier")
            start = opt.barpos
        k = start
        per = opt.rpg_bar if bar else opt.rpg
        while reads:
            for _ in range(per):
                if reads:
                    fill[k].append(reads.pop(0))
            k += 1
        k = max(k, 9)
        for e in extra:
            fill[min(k, 11)].append(e)
            k += 1 if k < 11 else 0
        for k in range(12):
            a(mf[k])
            for f in fill[k]:
                a(f)
        st["S"] = N

    def ring_adv(par):
        return [f"v_add_u32 v{vA[par]}, s40, v{vAb}",
                f"v_add_u32 v{vB[par]}, s40, v{vBb}",
                f"s_add_u32 s40, s40, {SLOT}",
                f"s_cmp_eq_u32 s40, {NS * SLOT}",
                f"s_cselect_b32 s40, 0, s40"]

    a("s_mov_b32 s41, 15")
    a.raw(".p2align 3")
    a.label(f"{L}loop")
    if opt.diag:
        a("s_cmp_lg_u32 s41, 8")
        a(f"s_cbranch_scc1 {L}nomid")
        a("s_memtime s[84:85]")
        a("s_memrealtime s[86:87]")
        a.label(f"{L}nomid")
    for par in range(2):
        group(par, 0)
        group(par, 1, extra=ring_adv(par))
        if par == 1:
            group(par, 2, extra=["s_sub_u32 s41, s41, 1", "s_cmp_lg_u32 s41, 0"])
        else:
            group(par, 2)
    a(f"s_cbranch_scc1 {L}loop")
    for par in range(2):
        group(par, 0)
        group(par, 1)
        group(par, 2, last=(par == 1))
    a("s_nop 15")
    if opt.diag:
        a("s_memtime s[70:71]")
        a("s_memrealtime s[82:83]")
        a("s_waitcnt lgkmcnt(0)")
    if opt.prio:
        a("s_setprio 0")

    if which == 2:
        for i in range(4):
            for jj in range(2):
                t = FR + 8 * i + 4 * jj
                q = ACC + 16 * i + 8 * jj
                for k in range(4):
                    a(f"v_cvt_pk_bf16_f32 v{t + k}, v{q + 2 * k}, v{q + 2 * k + 1}")
                a("s_nop 1")
                a(f"v_permlane32_swap_b32 v{t}, v{t + 2}")
                a(f"v_permlane32_swap_b32 v{t + 1}, v{t + 3}")
                a(f"buffer_store_dwordx4 {vr(t, 4)}, v12, s[16:19], s38 offen offset:{128 * i + 32 * jj}")
        diag_out()
        a("s_endpgm")
    else:
        T = FR
        for k in range(16):
            a(f"v_pk_add_f32 {vr(T + 2 * k, 2)}, {vr(ACC + 4 * k, 2)}, {vr(ACC + 4 * k + 2, 2)}")
        n = 16
        while n > 1:
            n //= 2
            for k in range(n):
                a(f"v_pk_add_f32 {vr(T + 2 * k, 2)}, {vr(T + 2 * k, 2)}, {vr(T + 2 * (k + n), 2)}")
        a(f"v_add_f32 v20, v{T}, v{T + 1}")
        allreduce_add(a, [20], [22])
        a(f"v_mul_f32 v20, {f32bits(-1.0 / 4096):#x}, v20")
        for k in range(4):
            a(f"v_mov_b32 v{24 + 2 * k}, 0")
            a(f"v_mov_b32 v{25 + 2 * k}, 0")
        for k in range(32):
            t = T + 2 * (k % 8)
            ac = 24 + 2 * (k % 4)
            a(f"v_pk_add_f32 {vr(t, 2)}, {vr(ACC + 2 * k, 2)}, v[20:21] op_sel_hi:[1,0]")
            a(f"v_pk_fma_f32 {vr(ac, 2)}, {vr(t, 2)}, {vr(t, 2)}, {vr(ac, 2)}")
        a("v_pk_add_f32 v[24:25], v[24:25], v[26:27]")
        a("v_pk_add_f32 v[28:29], v[28:29], v[30:31]")
        a("v_pk_add_f32 v[24:25], v[24:25], v[28:29]")
        a("v_add_f32 v21, v24, v25")
        allreduce_add(a, [21], [22])
        a("v_sub_f32 v20, 0, v20")
        a("v_mov_b32 v22, 0x7fc00000")
        a("v_cmp_eq_u32 vcc, -1, v20")
        a("v_cmp_eq_u32 s[44:45], -1, v21")
        a("s_nop 1")
        a("v_cndmask_b32 v20, v20, v22, vcc")
        a("v_cndmask_b32 v21, v21, v22, s[44:45]")
        a("s_lshl_b32 s46, s28, 2")
        a("s_lshr_b32 s47, s27, 1")
        a("s_add_u32 s46, s46, s47")
        a("s_lshl_b32 s46, s46, 10")
        a(f"s_add_u32 s46, s46, {ST2_OFF:#x}")
        a("s_and_b32 s47, s27, 1")
        a("s_lshl_b32 s47, s47, 6")
        a("s_add_u32 s47, s47, s29")
        a("s_add_u32 s47, s47, s30")
        a("s_lshl_b32 s47, s47, 3")
        a("s_add_u32 s47, s47, s46")
        a("v_mov_b32 v22, 0")
        a("s_mov_b64 exec, 1")
        a("buffer_store_dwordx2 v[20:21], v22, s[8:11], s47 offen sc0 sc1")
        a("s_mov_b64 exec, -1")
        for j in range(8):
            a(f"v_lshlrev_b32 v{216 + 2 * j}, 16, v{200 + j}")
            a(f"v_and_b32 v{217 + 2 * j}, 0xffff0000, v{200 + j}")
            a(f"v_lshlrev_b32 v{232 + 2 * j}, 16, v{208 + j}")
            a(f"v_and_b32 v{233 + 2 * j}, 0xffff0000, v{208 + j}")
        a("v_lshlrev_b32 v12, 16, v11")
        a("v_lshlrev_b32 v13, 4, v10")
        a("v_add_u32 v12, v12, v13")
        a("s_lshl_b32 s38, s28, 22")
        a("s_lshl_b32 s39, s27, 19")
        a("s_add_u32 s38, s38, s39")
        a("s_lshl_b32 s39, s37, 18")
        a("s_add_u32 s38, s38, s39")
        a("s_lshl_b32 s39, s29, 10")
        a("s_add_u32 s38, s38, s39")
        a("s_lshl_b32 s39, s36, 9")
        a("s_add_u32 s38, s38, s39")
        a(f"s_add_u32 s38, s38, {A2_OFF:#x}")
        a(f"s_add_u32 s39, s38, {2 << 16:#x}")
        a(f"s_mov_b32 s48, {opt.spin}")
        a.label(f"{L}poll")
        a("buffer_load_dwordx4 v[24:27], v2, s[8:11], s46 offen sc0 sc1")
        a("s_waitcnt vmcnt(0)")
        a("v_cmp_eq_u32 vcc, -1, v24")
        a("v_cmp_eq_u32 s[44:45], -1, v25")
        a("v_cmp_eq_u32 s[50:51], -1, v26")
        a("v_cmp_eq_u32 s[52:53], -1, v27")
        a("s_nop 1")
        a("s_or_b64 s[44:45], s[44:45], vcc")
        a("s_or_b64 s[50:51], s[50:51], s[52:53]")
        a("s_or_b64 s[44:45], s[44:45], s[50:51]")
        a(f"s_cbranch_scc0 {L}ready")
        a("s_sleep 1")
        a("s_sub_u32 s48, s48, 1")
        a("s_cmp_lg_u32 s48, 0")
        a(f"s_cbranch_scc1 {L}poll")
        a.label(f"{L}ready")
        if opt.diag:
            a("s_memtime s[72:73]")
            a("s_waitcnt lgkmcnt(0)")
        combine_stats(a, 24, 20, 21, 22, 23)
        a("v_sub_f32 v20, 0, v20")
        a("v_mov_b32 v22, v21")
        a(f"v_mov_b32 v24, {f32bits(-LOG2E):#x}")
        a("v_mov_b32 v28, 1.0")
        a("v_mov_b32 v29, 1.0")
        for k in range(8):
            a(f"v_pk_mul_f32 {vr(216 + 2 * k, 2)}, {vr(216 + 2 * k, 2)}, v[22:23] op_sel_hi:[1,0]")
        for k in range(8):
            a(f"v_pk_fma_f32 {vr(232 + 2 * k, 2)}, {vr(216 + 2 * k, 2)}, v[20:21], {vr(232 + 2 * k, 2)} op_sel_hi:[1,0,1]")
        E = FR
        OUT = FR + 32
        for i in range(4):
            for h in range(2):
                q = ACC + 16 * i + 8 * h
                e = E + 8 * ((2 * i + h) % 4)
                for k in range(4):
                    a(f"v_pk_fma_f32 {vr(q + 2 * k, 2)}, {vr(q + 2 * k, 2)}, {vr(216 + 8 * h + 2 * k, 2)}, {vr(232 + 8 * h + 2 * k, 2)}")
                for k in range(4):
                    a(f"v_pk_mul_f32 {vr(e + 2 * k, 2)}, {vr(q + 2 * k, 2)}, v[24:25] op_sel_hi:[1,0]")
                for k in range(8):
                    a(f"v_exp_f32 v{e + k}, v{e + k}")
                for k in range(4):
                    a(f"v_pk_add_f32 {vr(e + 2 * k, 2)}, {vr(e + 2 * k, 2)}, v[28:29]")
                for k in range(8):
                    a(f"v_rcp_f32 v{e + k}, v{e + k}")
                for k in range(4):
                    a(f"v_pk_mul_f32 {vr(q + 2 * k, 2)}, {vr(q + 2 * k, 2)}, {vr(e + 2 * k, 2)}")
                t = OUT + 4 * ((2 * i + h) % 8)
                for k in range(4):
                    a(f"v_cvt_pk_bf16_f32 v{t + k}, v{q + 2 * k}, v{q + 2 * k + 1}")
                a("s_nop 1")
                a(f"v_permlane32_swap_b32 v{t}, v{t + 2}")
                a(f"v_permlane32_swap_b32 v{t + 1}, v{t + 3}")
                so = "s38" if h == 0 else "s39"
                a(f"buffer_store_dwordx4 {vr(t, 4)}, v12, s[8:11], {so} offen offset:{1024 * i}")
        diag_out()
        a("s_endpgm")

    a.label(f"{L}loader")
    AOFF = A1_OFF if which == 1 else A2_OFF
    WOFF = W1R_OFF if which == 1 else W2R_OFF
    a("s_sub_u32 s30, s30, 4")
    a("s_and_b32 s36, s30, 1")
    a("s_lshr_b32 s37, s30, 1")
    a("s_mul_i32 s38, s37, 3")
    a("s_lshl_b32 s39, s28, 6")
    a("s_add_u32 s39, s39, s36")
    a("s_lshl_b32 s39, s39, 16")
    a(f"s_add_u32 s39, s39, {AOFF:#x}")
    a("s_add_u32 s40, s29, s38")
    for k in range(3):
        a(f"s_add_u32 s41, s40, {k - 1 & 0xffffffff:#x}")
        a("s_lshl_b32 s42, s41, 10")
        a("s_add_u32 s42, s42, s39")
        a("s_cmp_lt_u32 s41, 64")
        a(f"s_cselect_b32 s{44 + k}, s42, {OOB:#x}")
    a(f"s_mul_i32 s47, s36, {PLANEP}")
    a(f"s_mul_i32 s42, s38, {ROWP}")
    a("s_add_u32 s47, s47, s42")
    a("s_add_u32 s47, s47, 16")
    a("s_mul_i32 s48, s30, 5")
    a("s_min_u32 s48, s48, 14")
    a("s_lshl_b32 s48, s48, 10")
    a(f"s_mul_i32 s49, s27, {32 * B_BYTES}")
    a("s_add_u32 s49, s49, s48")
    a(f"s_add_u32 s49, s49, {WOFF:#x}")
    a(f"s_add_u32 s48, s48, {A_BYTES}")
    a("v_add_u32 v3, 4096, v2")
    a("s_mov_b32 s50, 0")
    a("s_cmp_ge_u32 s30, 2")
    a(f"s_cbranch_scc1 {L}ld7")

    for nb in (5, 4):
        n = 3 + nb
        LL = f"{L}ld{n}"
        a.label(LL)

        def issue(first=False):
            if opt.nodma and not first:
                return
            a("s_add_u32 s51, s50, s48")
            a("s_mov_b32 m0, s51")
            a("s_add_u32 s52, s50, s47")
            for k in range(4):
                a(f"buffer_load_dwordx4 v2, s[8:11], s49 offen offset:{1024 * k} lds")
            if nb == 5:
                a("s_add_u32 m0, s51, 4096")
                a("s_nop 0")
                a("buffer_load_dwordx4 v3, s[8:11], s49 offen lds")
            for k in range(3):
                a(f"s_add_u32 m0, s52, {k * ROWP}")
                a("s_nop 0")
                a(f"buffer_load_dwordx4 v2, s[8:11], s{44 + k} offen lds")
                a(f"s_add_u32 s{44 + k}, s{44 + k}, {2 << 16:#x}")
            a(f"s_add_u32 s49, s49, {B_BYTES}")
            a(f"s_add_u32 s50, s50, {SLOT}")
            a(f"s_cmp_eq_u32 s50, {NS * SLOT}")
            a("s_cselect_b32 s50, 0, s50")

        for s in range(NS):
            issue(True)
        a(f"s_waitcnt vmcnt({(NS - 1) * n})")
        a("s_barrier")
        a(f"s_mov_b32 s53, {32 - NS}")
        a.label(f"{LL}_loop")
        a(f"s_waitcnt vmcnt({(NS - 2) * n})")
        a("s_barrier")
        issue()
        a("s_sub_u32 s53, s53, 1")
        a("s_cmp_lg_u32 s53, 0")
        a(f"s_cbranch_scc1 {LL}_loop")
        for s in range(32 - NS, 31):
            a(f"s_waitcnt vmcnt({(31 - (s + 1)) * n})")
            a("s_barrier")
        a("s_endpgm")
    a.label(f"{L}end")
    a("s_endpgm")
    return name, 256, 512, NS * SLOT, kernel_desc(name, 256 if which == 1 else 200, 96)


HEADER = open("standalone__adm_resblock__diffusion.s.ref").read().split("; Override")[0]


def main():
    ap = argparse.ArgumentParser()
    ap.add_argument("-o", default="standalone__adm_resblock__diffusion.s")
    ap.add_argument("--ns", type=int, default=5)
    ap.add_argument("--prio", type=int, default=0)
    ap.add_argument("--barpos", type=int, default=0)
    ap.add_argument("--rpg", type=int, default=1)
    ap.add_argument("--rpg_bar", type=int, default=1)
    ap.add_argument("--diag", type=int, default=0)
    ap.add_argument("--order", type=int, default=0)
    ap.add_argument("--noread", type=int, default=0)
    ap.add_argument("--nomfma", type=int, default=0)
    ap.add_argument("--nodma", type=int, default=0)
    ap.add_argument("--spin", type=int, default=200000)
    opt = ap.parse_args()
    a = Asm()
    ks = []
    ks.append(gen_prep(a, opt))
    ks.append(gen_xform(a, opt))
    ks.append(gen_conv(a, 1, opt))
    ks.append(gen_conv(a, 2, opt))
    out = HEADER
    for name, g, blk, lds, _ in ks:
        out += f"; @launch kernel={name} grid=({g},1,1) block=({blk},1,1) lds={lds}\n"
    out += '.amdgcn_target "amdgcn-amd-amdhsa--gfx950"\n.text\n'
    out += a.text()
    out += '.section .rodata,"a"\n'
    for k in ks:
        out += k[4]
    open(opt.o, "w").write(out)


if __name__ == "__main__":
    main()
```

```python
import sys, argparse
from gen import Asm, vr, sr, srd, allreduce_add, kernel_header, kernel_desc, combine_stats, f32bits, HEADER, LOG2E

V1_OFF = 0x0000000
V2_OFF = 0x1000000
U1_OFF = 0x2000000
U2_OFF = 0x2800000
ST1_OFF = 0x3000000
ST2_OFF = 0x3002000
EMB_OFF = 0x3004000
DBG_OFF = 0x3100000
WS_USED = 0x3200000
OOB = 0x80000000
SENT = 0xFFFFFFFF
X_BYTES = 2 * 512 * 64 * 64 * 2
W_BYTES = 512 * 512 * 9 * 2
U_BYTES = 8 * 16 * 4 * 12 * 1024
V_BYTES = 2 * X_BYTES


def reg(i, n=4):
    if i < 256:
        return vr(i, n)
    i -= 256
    return f"a[{i}:{i + n - 1}]" if n > 1 else f"a{i}"


def diag_begin(a, opt):
    if opt.diag:
        a("s_memtime s[64:65]")
        a("s_memrealtime s[66:67]")


def diag_stamp(a, opt, k):
    if opt.diag:
        a(f"s_memtime s[{64 + 4 * k}:{65 + 4 * k}]")
        a(f"s_memrealtime s[{66 + 4 * k}:{67 + 4 * k}]")
        a("s_waitcnt lgkmcnt(0)")


def diag_end(a, opt, kidx, srdws, swave, vtmp=0):
    if not opt.diag:
        return
    a("s_waitcnt vmcnt(0)")
    a("s_memtime s[84:85]")
    a("s_memrealtime s[86:87]")
    a("s_getreg_b32 s88, hwreg(HW_REG_XCC_ID)")
    a("s_waitcnt lgkmcnt(0)")
    for k in range(28):
        a(f"v_mov_b32 v{vtmp + k}, s{64 + k}")
    a("s_lshl_b32 s62, s2, 2")
    a(f"s_add_u32 s62, s62, s{swave}")
    a("s_lshl_b32 s62, s62, 7")
    a(f"s_add_u32 s62, s62, {DBG_OFF + kidx * 0x40000:#x}")
    a(f"v_mov_b32 v{vtmp + 28}, 0")
    a("s_mov_b64 exec, 1")
    for k in range(7):
        a(f"buffer_store_dwordx4 {vr(vtmp + 4 * k, 4)}, v{vtmp + 28}, {sr(srdws, 4)}, s62 offen offset:{16 * k}")


def u_transform(a, Wd, T, O, H, vst, srdws, sdst, ssel0, ssel1):
    def unpack(dst, e):
        src = Wd + e // 2
        if e % 2 == 0:
            a(f"v_lshlrev_b32 v{dst}, 16, v{src}")
        else:
            a(f"v_and_b32 v{dst}, 0xffff0000, v{src}")
    for dy in range(3):
        ob = O + 16 * (dy % 2)
        for jj in range(4):
            t = T + 8 * (jj % 2)
            for dx in range(3):
                e1 = 18 * jj + 3 * dy + dx
                unpack(t + 2 * dx, e1)
                unpack(t + 2 * dx + 1, e1 + 9)
            for xi, dx in ((0, 0), (3, 2)):
                e1 = 18 * jj + 3 * dy + dx
                e2 = e1 + 9
                sel = ssel0 if e1 % 2 == 0 else ssel1
                a(f"v_perm_b32 v{ob + 4 * xi + jj}, v{Wd + e2 // 2}, v{Wd + e1 // 2}, s{sel}")
            a(f"v_pk_add_f32 {vr(t, 2)}, {vr(t, 2)}, {vr(t + 4, 2)}")
            a(f"v_pk_mul_f32 {vr(t, 2)}, {vr(t, 2)}, {vr(H, 2)} op_sel_hi:[1,0]")
            a(f"v_pk_fma_f32 {vr(t + 4, 2)}, {vr(t + 2, 2)}, {vr(H, 2)}, {vr(t, 2)} op_sel_hi:[1,0,1]")
            a(f"v_pk_fma_f32 {vr(t + 6, 2)}, {vr(t + 2, 2)}, {vr(H, 2)}, {vr(t, 2)} op_sel:[0,1,0] op_sel_hi:[1,1,1]")
            a(f"v_cvt_pk_bf16_f32 v{ob + 4 + jj}, v{t + 4}, v{t + 5}")
            a(f"v_cvt_pk_bf16_f32 v{ob + 8 + jj}, v{t + 6}, v{t + 7}")
        for xi in range(4):
            a(f"s_add_u32 s{sdst + 1}, s{sdst}, {xi * 12288 + dy * 4096}")
            a(f"buffer_store_dwordx4 {vr(ob + 4 * xi, 4)}, v{vst}, {sr(srdws, 4)}, s{sdst + 1} offen")


def silu_block(a, Y, n, E, SC, SH, CL, C1):
    for k in range(0, n, 2):
        a(f"v_pk_fma_f32 {vr(Y + k, 2)}, {vr(Y + k, 2)}, {vr(SC + k, 2)}, {vr(SH + k, 2)}")
    for k in range(0, n, 2):
        a(f"v_pk_mul_f32 {vr(E + k, 2)}, {vr(Y + k, 2)}, {vr(CL, 2)} op_sel_hi:[1,0]")
    for k in range(n):
        a(f"v_exp_f32 v{E + k}, v{E + k}")
    for k in range(0, n, 2):
        a(f"v_pk_add_f32 {vr(E + k, 2)}, {vr(E + k, 2)}, {vr(C1, 2)} op_sel_hi:[1,0]")
    for k in range(n):
        a(f"v_rcp_f32 v{E + k}, v{E + k}")
    for k in range(0, n, 2):
        a(f"v_pk_mul_f32 {vr(Y + k, 2)}, {vr(Y + k, 2)}, {vr(E + k, 2)}")


def v_transform(a, A, T, O, store):
    DPP = "row_mask:0xf bank_mask:0xf bound_ctrl:0"
    NEG = "neg_lo:[0,1] neg_hi:[0,1]"
    plan = [
        (1, 0, "add", A[0], A[1]),
        (2, 0, "sub", A[1], A[0]),
        (3, 0, "sub", A[0], A[2]),
        (0, 1, "sub", A[1], A[3]),
        (1, 1, "add", A[2], A[3]),
        (2, 1, "sub", A[3], A[2]),
        (0, 0, "shr", A[3], A[1]),
        (3, 1, "shl", A[0], A[2]),
    ]
    for n, (xi, p, op, x, y) in enumerate(plan):
        t = T + 8 * (n % 2)
        o = O + 4 * n
        if op in ("add", "sub"):
            for j in range(0, 8, 2):
                a(f"v_pk_add_f32 {vr(t + j, 2)}, {vr(x + j, 2)}, {vr(y + j, 2)}" + (" " + NEG if op == "sub" else ""))
        elif op == "shr":
            for j in range(8):
                a(f"v_sub_f32_dpp v{t + j}, v{x + j}, v{y + j} row_shr:1 {DPP}")
        else:
            for j in range(8):
                a(f"v_subrev_f32_dpp v{t + j}, v{x + j}, v{y + j} row_shl:1 {DPP}")
        for j in range(4):
            a(f"v_cvt_pk_bf16_f32 v{o + j}, v{t + 2 * j}, v{t + 2 * j + 1}")
        store(xi, p, o)


def gen_prep(a, opt):
    name = "prep_kernel"
    kernel_header(a, name)
    NW = 256 + 32
    a(f"s_cmp_ge_u32 s2, {NW}")
    a("s_cbranch_scc1 prep_end")
    diag_begin(a, opt)
    a("s_load_dwordx4 s[4:7], s[0:1], 0")
    a("s_load_dwordx4 s[8:11], s[0:1], 32")
    a("s_load_dwordx2 s[12:13], s[0:1], 64")
    a("s_load_dwordx2 s[14:15], s[0:1], 88")
    a("v_lshrrev_b32 v1, 6, v0")
    a("v_and_b32 v0, 63, v0")
    a("s_nop 0")
    a("v_readfirstlane_b32 s3, v1")
    a("s_waitcnt lgkmcnt(0)")
    srd(a, 16, 4, X_BYTES)
    srd(a, 20, 14, WS_USED)
    srd(a, 28, 6, 2 * 768 * 2)
    srd(a, 32, 10, 768 * 512 * 2)
    a("s_lshl_b32 s36, s2, 2")
    a("s_add_u32 s36, s36, s3")
    a("s_cmp_ge_u32 s36, 512")
    a("s_cselect_b32 s24, s12, s8")
    a("s_cselect_b32 s25, s13, s9")
    a(f"s_mov_b32 s40, {U1_OFF:#x}")
    a(f"s_cselect_b32 s40, {U2_OFF:#x}, s40")
    a("s_and_b32 s25, s25, 0xffff")
    a(f"s_mov_b32 s26, {W_BYTES:#x}")
    a("s_mov_b32 s27, 0x20000")
    a("s_cmp_ge_u32 s2, 256")
    a("s_cbranch_scc1 prep_emb")
    a("v_lshlrev_b32 v2, 4, v0")
    a("s_lshl_b32 s37, s36, 13")
    a("s_add_u32 s38, s37, 4096")
    X = 8
    for j in range(8):
        so = "s37" if j < 4 else "s38"
        a(f"buffer_load_dwordx4 {vr(X + 4 * j, 4)}, v2, s[16:19], {so} offen offset:{(j % 4) * 1024}")
    a("v_and_b32 v3, 3, v0")
    a("v_bfe_u32 v4, v0, 2, 2")
    a("v_lshl_add_u32 v3, v4, 3, v3")
    a("v_mul_u32_u24 v3, 9216, v3")
    a("v_lshrrev_b32 v4, 4, v0")
    a("v_mul_u32_u24 v4, 144, v4")
    a("v_add_u32 v3, v3, v4")
    a("s_lshr_b32 s41, s36, 4")
    a("s_and_b32 s41, s41, 31")
    a("s_and_b32 s42, s36, 15")
    a("s_lshr_b32 s43, s41, 1")
    a("s_lshl_b32 s43, s43, 5")
    a("s_and_b32 s44, s41, 1")
    a("s_lshl_b32 s44, s44, 2")
    a("s_add_u32 s43, s43, s44")
    a("s_mul_i32 s43, s43, 9216")
    a("s_mul_i32 s44, s42, 576")
    a("s_add_u32 s43, s43, s44")
    Wd = 40
    for k in range(9):
        a(f"buffer_load_dwordx4 {vr(Wd + 4 * k, 4)}, v3, s[24:27], s43 offen offset:{16 * k}")
    a("s_lshr_b32 s45, s41, 2")
    a("s_lshl_b32 s45, s45, 4")
    a("s_add_u32 s45, s45, s42")
    a("s_mul_i32 s45, s45, 49152")
    a("s_and_b32 s46, s41, 3")
    a("s_lshl_b32 s46, s46, 10")
    a("s_add_u32 s45, s45, s46")
    a("s_add_u32 s52, s45, s40")
    a("s_mov_b32 s47, 0x3f803f80")
    a("v_mov_b32 v4, 0")
    a("v_mov_b32 v5, 0")
    a("s_waitcnt vmcnt(9)")
    for j in range(32):
        a(f"v_dot2_f32_bf16 v{4 + (j & 1)}, v{X + j}, s47, v{4 + (j & 1)}")
    a("s_nop 2")
    a("v_add_f32 v4, v4, v5")
    allreduce_add(a, [4], [5])
    a(f"v_mul_f32 v4, {f32bits(-1.0 / 4096):#x}, v4")
    for k in range(4):
        a(f"v_mov_b32 v{80 + k}, 0")
    for j in range(32):
        t = 84 + 2 * (j & 3)
        acc = 80 + 2 * (j & 1)
        a(f"v_lshlrev_b32 v{t}, 16, v{X + j}")
        a(f"v_and_b32 v{t + 1}, 0xffff0000, v{X + j}")
        a(f"v_pk_add_f32 {vr(t, 2)}, {vr(t, 2)}, v[4:5] op_sel_hi:[1,0]")
        a(f"v_pk_fma_f32 {vr(acc, 2)}, {vr(t, 2)}, {vr(t, 2)}, {vr(acc, 2)}")
    a("v_pk_add_f32 v[80:81], v[80:81], v[82:83]")
    a("v_add_f32 v5, v80, v81")
    allreduce_add(a, [5], [6])
    a("v_sub_f32 v4, 0, v4")
    a(f"v_mov_b32 v6, {SENT:#x}")
    a(f"v_mov_b32 v7, {SENT:#x}")
    a("v_mov_b32 v80, 0")
    a("s_lshl_b32 s48, s36, 3")
    a(f"s_add_u32 s49, s48, {ST1_OFF:#x}")
    a(f"s_add_u32 s48, s48, {ST2_OFF:#x}")
    a("s_mov_b64 exec, 1")
    a("buffer_store_dwordx2 v[4:5], v80, s[20:23], s49 offen")
    a("buffer_store_dwordx2 v[6:7], v80, s[20:23], s48 offen")
    a("s_mov_b64 exec, -1")
    a("s_mov_b32 s50, 0x07060100")
    a("s_mov_b32 s51, 0x05040302")
    a("v_mov_b32 v76, 0.5")
    a("v_mov_b32 v77, -0.5")
    a("s_waitcnt vmcnt(2)")
    u_transform(a, Wd, 80, 8, 76, 2, 20, 52, 50, 51)
    diag_end(a, opt, 0, 20, 3, 96)
    a("s_endpgm")

    a.label("prep_emb")
    a("s_sub_u32 s36, s2, 256")
    a("v_lshrrev_b32 v2, 1, v0")
    a("s_mul_i32 s37, s3, 192")
    a("v_add_u32 v2, s37, v2")
    a("v_lshlrev_b32 v3, 10, v2")
    a("v_and_b32 v4, 1, v0")
    a("v_lshlrev_b32 v4, 4, v4")
    a("v_add_u32 v3, v3, v4")
    a("s_lshl_b32 s38, s36, 5")
    Wm = 8
    for p in range(6):
        a(f"buffer_load_dwordx4 {vr(Wm + 4 * p, 4)}, v3, s[32:35], s38 offen")
        if p < 5:
            a("s_add_u32 s38, s38, 32768")
    a("v_lshlrev_b32 v5, 1, v2")
    T = 32
    for b in range(2):
        for p in range(6):
            a(f"buffer_load_ushort v{T + b * 6 + p}, v5, s[28:31], 0 offen offset:{b * 1536 + p * 64}")
    ACC = 48
    for i in range(16):
        a(f"v_mov_b32 v{ACC + i}, 0")
    a("s_waitcnt vmcnt(0)")
    for i in range(12):
        a(f"v_lshlrev_b32 v{T + i}, 16, v{T + i}")
    for i in range(12):
        a(f"v_mul_f32 v{64 + i}, {f32bits(-LOG2E):#x}, v{T + i}")
    for i in range(12):
        a(f"v_exp_f32 v{64 + i}, v{64 + i}")
    for i in range(12):
        a(f"v_add_f32 v{64 + i}, 1.0, v{64 + i}")
    for i in range(12):
        a(f"v_rcp_f32 v{64 + i}, v{64 + i}")
    for i in range(12):
        a(f"v_mul_f32 v{T + i}, v{T + i}, v{64 + i}")
    for p in range(6):
        for d in range(4):
            a(f"v_lshlrev_b32 v{64 + 2 * d}, 16, v{Wm + 4 * p + d}")
            a(f"v_and_b32 v{65 + 2 * d}, 0xffff0000, v{Wm + 4 * p + d}")
        for b in range(2):
            for c in range(8):
                a(f"v_fmac_f32 v{ACC + b * 8 + c}, v{T + b * 6 + p}, v{64 + c}")
    regs = [ACC + i for i in range(16)]
    for st in ("quad_perm:[2,3,0,1]", "row_ror:4", "row_ror:8"):
        for r in regs:
            a(f"v_add_f32_dpp v{r}, v{r}, v{r} {st} row_mask:0xf bank_mask:0xf")
    for sw in ("v_permlane16_swap_b32", "v_permlane32_swap_b32"):
        for r in regs:
            a(f"v_mov_b32 v{r + 16}, v{r}")
        for r in regs:
            a(f"{sw} v{r}, v{r + 16}")
        for r in regs:
            a(f"v_add_f32 v{r}, v{r}, v{r + 16}")
    a("v_lshlrev_b32 v4, 1, v4")
    a("s_lshl_b32 s39, s3, 7")
    a("v_add_u32 v4, s39, v4")
    a("s_mov_b64 exec, 3")
    a(f"ds_write_b128 v4, {vr(ACC, 4)}")
    a(f"ds_write_b128 v4, {vr(ACC + 4, 4)} offset:16")
    a(f"ds_write_b128 v4, {vr(ACC + 8, 4)} offset:64")
    a(f"ds_write_b128 v4, {vr(ACC + 12, 4)} offset:80")
    a("s_mov_b64 exec, -1")
    a("s_waitcnt lgkmcnt(0)")
    a("s_barrier")
    a("s_cmp_lg_u32 s3, 0")
    a("s_cbranch_scc1 prep_end")
    a("v_and_b32 v5, 31, v0")
    a("v_lshlrev_b32 v5, 2, v5")
    for w in range(4):
        a(f"ds_read_b32 v{8 + w}, v5 offset:{w * 128}")
    a("v_and_b32 v6, 15, v0")
    a("v_lshlrev_b32 v6, 2, v6")
    a("v_and_b32 v7, 16, v0")
    a("v_lshlrev_b32 v7, 7, v7")
    a("v_add_u32 v6, v6, v7")
    a("s_lshl_b32 s39, s36, 6")
    a(f"s_add_u32 s39, s39, {EMB_OFF:#x}")
    a("s_waitcnt lgkmcnt(0)")
    a("v_add_f32 v8, v8, v9")
    a("v_add_f32 v10, v10, v11")
    a("v_add_f32 v8, v8, v10")
    a("s_mov_b32 exec_hi, 0")
    a("buffer_store_dword v8, v6, s[20:23], s39 offen")
    a("s_mov_b64 exec, -1")
    diag_end(a, opt, 0, 20, 3, 96)
    a.label("prep_end")
    a("s_endpgm")
    return name, NW, 256, 512, kernel_desc(name, 128 if opt.diag else 96, 96)


def gen_xform(a, opt):
    name = "xform_kernel"
    kernel_header(a, name)
    NW = 512
    a(f"s_cmp_ge_u32 s2, {NW}")
    a("s_cbranch_scc1 xform_end")
    diag_begin(a, opt)
    a("s_load_dwordx2 s[4:5], s[0:1], 0")
    a("s_load_dwordx4 s[8:11], s[0:1], 16")
    a("s_load_dwordx2 s[14:15], s[0:1], 88")
    a("v_lshrrev_b32 v1, 6, v0")
    a("v_and_b32 v0, 63, v0")
    a("s_nop 0")
    a("v_readfirstlane_b32 s3, v1")
    a("s_lshl_b32 s36, s2, 2")
    a("v_lshlrev_b32 v2, 4, v0")
    a("v_lshrrev_b32 v3, 4, v0")
    a("v_and_b32 v12, 15, v0")
    a("s_add_u32 s36, s36, s3")
    a("s_lshr_b32 s37, s36, 6")
    a("s_and_b32 s38, s36, 63")
    a("v_lshlrev_b32 v13, 16, v3")
    a("v_lshl_add_u32 v13, v12, 3, v13")
    a("v_lshlrev_b32 v3, 4, v3")
    a("s_waitcnt lgkmcnt(0)")
    srd(a, 16, 4, X_BYTES)
    srd(a, 20, 14, WS_USED)
    srd(a, 24, 8, 1024)
    srd(a, 28, 10, 1024)
    a("s_lshr_b32 s48, s37, 2")
    a("s_lshl_b32 s48, s48, 10")
    a(f"s_add_u32 s48, s48, {ST1_OFF:#x}")
    a("buffer_load_dwordx4 v[4:7], v2, s[20:23], s48 offen")
    a("s_and_b32 s39, s37, 15")
    a("s_lshl_b32 s39, s39, 6")
    a("buffer_load_dwordx4 v[16:19], v3, s[24:27], s39 offen")
    a("buffer_load_dwordx4 v[20:23], v3, s[28:31], s39 offen")
    a("s_lshl_b32 s49, s37, 18")
    a("s_lshl_b32 s50, s38, 7")
    a("s_add_u32 s49, s49, s50")
    X = 24
    for c in range(8):
        a(f"buffer_load_dwordx2 {vr(X + 2 * c, 2)}, v13, s[16:19], s49 offen")
        if c < 7:
            a("s_add_u32 s49, s49, 8192")
    a("s_lshl_b32 s51, s37, 19")
    a("s_lshl_b32 s50, s38, 11")
    a("s_add_u32 s51, s51, s50")
    for xi in range(1, 4):
        a(f"s_add_u32 s{51 + xi}, s51, {xi << 17:#x}")
    a("s_waitcnt vmcnt(10)")
    combine_stats(a, 4, 8, 9, 10, 11)
    a("s_waitcnt vmcnt(8)")
    SC, SH = 40, 48
    for j in range(4):
        a(f"v_lshlrev_b32 v{SC + 2 * j}, 16, v{16 + j}")
        a(f"v_and_b32 v{SC + 2 * j + 1}, 0xffff0000, v{16 + j}")
        a(f"v_lshlrev_b32 v{SH + 2 * j}, 16, v{20 + j}")
        a(f"v_and_b32 v{SH + 2 * j + 1}, 0xffff0000, v{20 + j}")
    a("v_sub_f32 v8, 0, v8")
    a("v_mov_b32 v10, v9")
    a(f"v_mov_b32 v4, {f32bits(-LOG2E):#x}")
    a("v_mov_b32 v6, 1.0")
    for j in range(4):
        a(f"v_pk_mul_f32 {vr(SC + 2 * j, 2)}, {vr(SC + 2 * j, 2)}, v[10:11] op_sel_hi:[1,0]")
    for j in range(4):
        a(f"v_pk_fma_f32 {vr(SH + 2 * j, 2)}, {vr(SC + 2 * j, 2)}, v[8:9], {vr(SH + 2 * j, 2)} op_sel_hi:[1,0,1]")
    A = [56, 64, 72, 80]
    E = 88
    for c in range(8):
        a(f"s_waitcnt vmcnt({7 - c})")
        for d in range(2):
            a(f"v_lshlrev_b32 v{A[2 * d] + c}, 16, v{X + 2 * c + d}")
            a(f"v_and_b32 v{A[2 * d + 1] + c}, 0xffff0000, v{X + 2 * c + d}")
    for k in range(4):
        silu_block(a, A[k], 8, E + 8 * (k % 2), SC, SH, 4, 6)

    def store(xi, p, o):
        a(f"buffer_store_dwordx4 {vr(o, 4)}, v2, s[20:23], s{51 + xi} offen offset:{1024 * p}")
    v_transform(a, A, E, 8, store)
    diag_end(a, opt, 1, 20, 3, 96)
    a.label("xform_end")
    a("s_endpgm")
    return name, NW, 256, 0, kernel_desc(name, 128 if opt.diag else 104, 96)


def gen_conv(a, which, opt):
    name = f"conv{which}_kernel"
    L = f"c{which}_"
    VOFF = V1_OFF if which == 1 else V2_OFF
    UOFF = U1_OFF if which == 1 else U2_OFF
    kernel_header(a, name)
    a("s_cmp_ge_u32 s2, 256")
    a(f"s_cbranch_scc1 {L}end")
    diag_begin(a, opt)
    a("s_load_dwordx2 s[4:5], s[0:1], 88")
    if which == 1:
        a("s_load_dwordx4 s[32:35], s[0:1], 48")
    else:
        a("s_load_dwordx2 s[32:33], s[0:1], 0")
        a("s_load_dwordx2 s[34:35], s[0:1], 72")
    a("v_lshrrev_b32 v1, 6, v0")
    a("v_and_b32 v0, 63, v0")
    a("s_and_b32 s24, s2, 7")
    a("s_lshr_b32 s25, s2, 3")
    a("v_readfirstlane_b32 s30, v1")
    a("s_and_b32 s26, s24, 3")
    a("s_lshl_b32 s26, s26, 3")
    a("s_and_b32 s27, s25, 7")
    a("s_add_u32 s26, s26, s27")
    a("s_lshr_b32 s27, s24, 2")
    a("s_lshl_b32 s27, s27, 2")
    a("s_lshr_b32 s28, s25, 3")
    a("s_add_u32 s27, s27, s28")
    a("s_lshr_b32 s28, s26, 4")
    a("s_and_b32 s29, s26, 15")
    a("s_lshl_b32 s29, s29, 2")
    a("v_lshlrev_b32 v2, 4, v0")
    a("v_add_u32 v3, 4096, v2")
    a("v_add_u32 v4, 8192, v2")
    a("v_lshrrev_b32 v5, 4, v0")
    a("v_and_b32 v6, 15, v0")
    a("s_lshl_b32 s40, s28, 23")
    a("s_lshl_b32 s44, s30, 17")
    a("s_add_u32 s40, s40, s44")
    a("s_lshl_b32 s44, s29, 11")
    a("s_add_u32 s40, s40, s44")
    if VOFF:
        a(f"s_add_u32 s40, s40, {VOFF:#x}")
    a("s_sub_u32 s41, s40, 2048")
    a("s_cmp_eq_u32 s29, 0")
    a(f"s_cselect_b32 s41, {OOB:#x}, s41")
    a("s_add_u32 s42, s40, 8192")
    a("s_cmp_eq_u32 s29, 60")
    a(f"s_cselect_b32 s42, {OOB:#x}, s42")
    a(f"s_mul_i32 s43, s27, {16 * 49152}")
    a("s_mul_i32 s44, s30, 12288")
    a("s_add_u32 s43, s43, s44")
    a(f"s_add_u32 s43, s43, {UOFF:#x}")
    a("s_waitcnt lgkmcnt(0)")
    srd(a, 8, 4, WS_USED)

    ACC = 128

    def acc(i, p, q):
        return ACC + ((i * 2 + p) * 4 + q) * 4

    def F(S, k):
        n = S * 24 + k
        return 256 + 4 * n if n < 64 else 96 + 4 * (n - 64)

    def fV(S, r, p):
        return F(S, r * 2 + p)

    def fU(S, dy, q):
        return F(S, 12 + dy * 4 + q)

    def ldV(S, r, p):
        if r == 0:
            return f"buffer_load_dwordx4 {reg(fV(S, r, p))}, v2, s[8:11], s41 offen offset:{p * 1024}"
        if r == 5:
            return f"buffer_load_dwordx4 {reg(fV(S, r, p))}, v2, s[8:11], s42 offen offset:{p * 1024}"
        kk = (r - 1) * 2 + p
        return f"buffer_load_dwordx4 {reg(fV(S, r, p))}, v{2 + kk // 4}, s[8:11], s40 offen offset:{(kk % 4) * 1024}"

    def ldU(S, dy, q):
        return f"buffer_load_dwordx4 {reg(fU(S, dy, q))}, v{2 + dy}, s[8:11], s43 offen offset:{q * 1024}"

    def stage_loads(S):
        l = [ldU(S, 0, 0), ldV(S, 0, 0), ldV(S, 0, 1), ldV(S, 1, 0), ldV(S, 1, 1), ldV(S, 2, 0), ldV(S, 2, 1),
             ldV(S, 3, 0), ldV(S, 3, 1), ldU(S, 0, 1), ldU(S, 0, 2), ldU(S, 0, 3)]
        l += [ldU(S, 1, q) for q in range(4)] + [ldV(S, 4, 0), ldV(S, 4, 1)]
        l += [ldU(S, 2, q) for q in range(4)] + [ldV(S, 5, 0), ldV(S, 5, 1)]
        return l
    ADV = [f"s_add_u32 s40, s40, {1 << 19:#x}", f"s_add_u32 s41, s41, {1 << 19:#x}",
           f"s_add_u32 s42, s42, {1 << 19:#x}", "s_add_u32 s43, s43, 49152"]

    def mf(S, dy, q, i, p):
        c = vr(acc(i, p, q), 4)
        return f"v_mfma_f32_16x16x32_bf16 {c}, {reg(fU(S, dy, q))}, {reg(fV(S, i + dy, p))}, {c}"

    npre = 0
    if which == 1:
        a("s_lshl_b32 s38, s28, 11")
        a("s_lshl_b32 s39, s27, 8")
        a("s_add_u32 s38, s38, s39")
        a(f"s_add_u32 s38, s38, {EMB_OFF:#x}")
        a("s_cmp_eq_u32 s30, 1")
        a(f"s_cselect_b32 s38, s38, {OOB:#x}")
        a("v_lshlrev_b32 v7, 5, v5")
        for q in range(4):
            a(f"buffer_load_dwordx4 {vr(ACC + 4 * q, 4)}, v7, s[8:11], s38 offen offset:{128 * (q >> 1) + 16 * (q & 1)}")
    for S in range(2):
        for l in stage_loads(S):
            a(l)
        for x in ADV:
            a(x)
    if which == 1:
        srd(a, 12, 32, 1024)
        srd(a, 16, 34, 1024)
        a("s_waitcnt vmcnt(48)")
        for t in range(1, 8):
            for k in range(16):
                a(f"v_mov_b32 v{ACC + 16 * t + k}, v{ACC + k}")
    else:
        srd(a, 12, 32, X_BYTES)
        srd(a, 16, 34, X_BYTES)
        for k in range(128):
            a(f"v_mov_b32 v{ACC + k}, 0")
    if opt.diag:
        a("s_waitcnt vmcnt(36)")
        diag_stamp(a, opt, 1)

    def stage(S, loads, pending, extra_tail=()):
        loads = list(loads)
        need = [12, 18, 24]
        issued = 0
        cnt = 0
        for dy in range(3):
            a(f"s_waitcnt vmcnt({24 - need[dy] + pending + issued})")
            for q in range(4):
                for i in range(4):
                    for p in range(2):
                        a(mf(S, dy, q, i, p))
                        if loads and cnt % opt.spread == opt.spread - 1:
                            x = loads.pop(0)
                            for y in (x if isinstance(x, list) else [x]):
                                a(y)
                            issued += 1
                        cnt += 1
        assert not loads
        for x in extra_tail:
            a(x)

    a("s_mov_b32 s45, 4")
    a.raw(".p2align 3")
    a.label(f"{L}loop")
    for S in range(3):
        tail = list(ADV)
        if S == 2:
            tail += ["s_sub_u32 s45, s45, 1", "s_cmp_lg_u32 s45, 0"]
        stage(S, stage_loads((S + 2) % 3), 24, tail)
    a(f"s_cbranch_scc1 {L}loop")
    stage(0, stage_loads(2), 24, ADV)
    stage(1, stage_loads(0), 24)
    pre = []
    if which == 1:
        a("s_lshl_b32 s39, s27, 7")
        a("v_lshlrev_b32 v7, 4, v5")
        for Q in range(2):
            pre.append(f"buffer_load_dwordx4 {vr(16 + 4 * Q, 4)}, v7, s[12:15], s39 offen offset:{64 * Q}")
            pre.append(f"buffer_load_dwordx4 {vr(24 + 4 * Q, 4)}, v7, s[16:19], s39 offen offset:{64 * Q}")
    else:
        a("s_lshl_b32 s38, s28, 22")
        a("s_lshl_b32 s39, s27, 19")
        a("s_add_u32 s38, s38, s39")
        a("s_add_u32 s39, s29, s30")
        a("s_lshl_b32 s39, s39, 7")
        a("s_add_u32 s38, s38, s39")
        a("v_lshlrev_b32 v7, 16, v5")
        a("v_lshl_add_u32 v7, v6, 3, v7")
        for Q in range(2):
            for j in range(8):
                k = Q * 8 + j
                pre.append([f"s_add_u32 s39, s38, {(32 * Q + j) * 8192}",
                            f"buffer_load_dwordx2 {vr(16 + 2 * k, 2)}, v7, s[12:15], s39 offen"])
    stage(2, pre, 24)
    npre = len(pre)
    a("s_lshl_b32 s46, s30, 13")
    a("v_add_u32 v8, s46, v2")
    a("v_add_u32 v9, 0x10000, v8")
    a("s_lshl_b32 s46, s30, 15")
    a("v_add_u32 v10, s46, v2")
    a(f"s_waitcnt vmcnt({npre})")
    for w in range(1, 4):
        a(f"s_cmp_eq_u32 s30, {w}")
        a(f"s_cbranch_scc1 {L}last{w}")
    Y = 64

    def yreg(p, e, q):
        return Y + 16 * (2 * p + e) + 4 * q
    for w in range(4):
        a.label(f"{L}last{w}")
        rows = [i for i in range(4) if i != w] + [w]
        prev = None
        for i in rows:
            wr = []
            if prev is not None:
                for q in range(4):
                    for p in range(2):
                        t = p * 4 + q
                        wr.append(f"ds_write_b128 v{8 + prev // 2}, {vr(acc(prev, p, q), 4)} offset:{(prev % 2) * 32768 + t * 1024}")
            n = 0
            for dy in range(3):
                for q in range(4):
                    for p in range(2):
                        a(mf(0, dy, q, i, p))
                        if wr and n >= 2 and n % 2 == 0:
                            a(wr.pop(0))
                        n += 1
            prev = i
        a("s_waitcnt lgkmcnt(0)")
        a("s_barrier")
        diag_stamp(a, opt, 2)
        for t in range(8):
            p, q = t // 4, t % 4
            for xi in range(4):
                if xi != w:
                    a(f"ds_read_b128 {vr(acc(xi, p, q), 4)}, v10 offset:{xi * 8192 + t * 1024}")
        if w < 3:
            a(f"s_branch {L}join")
    a.label(f"{L}join")
    NEG = "neg_lo:[0,1] neg_hi:[0,1]"
    if which == 2:
        a("s_waitcnt vmcnt(0)")
        for Q in range(2):
            for j in range(8):
                k = Q * 8 + j
                for p in range(2):
                    a(f"v_lshlrev_b32 v{Y + 16 * (2 * p) + k}, 16, v{16 + 2 * k + p}")
                    a(f"v_and_b32 v{Y + 16 * (2 * p + 1) + k}, 0xffff0000, v{16 + 2 * k + p}")
    else:
        a("s_nop 7")
    for t in range(8):
        p, q = t // 4, t % 4
        a(f"s_waitcnt lgkmcnt({min(15, 3 * (7 - t))})")
        for h in range(2):
            y0 = vr(yreg(p, 0, q) + 2 * h, 2)
            y1 = vr(yreg(p, 1, q) + 2 * h, 2)
            M = [vr(acc(xi, p, q) + 2 * h, 2) for xi in range(4)]
            if which == 2:
                a(f"v_pk_add_f32 {y0}, {y0}, {M[0]}")
                a(f"v_pk_add_f32 {y1}, {y1}, {M[3]} {NEG}")
                a(f"v_pk_add_f32 {y0}, {y0}, {M[1]}")
                a(f"v_pk_add_f32 {y1}, {y1}, {M[1]}")
            else:
                a(f"v_pk_add_f32 {y0}, {M[0]}, {M[1]}")
                a(f"v_pk_add_f32 {y1}, {M[1]}, {M[3]} {NEG}")
            a(f"v_pk_add_f32 {y0}, {y0}, {M[2]}")
            a(f"v_pk_add_f32 {y1}, {y1}, {M[2]} {NEG}")

    if which == 2:
        for Q in range(2):
            for j in range(8):
                k = Q * 8 + j
                o = 16 + 2 * k
                a(f"v_cvt_pk_bf16_f32 v{o}, v{Y + k}, v{Y + 16 + k}")
                a(f"v_cvt_pk_bf16_f32 v{o + 1}, v{Y + 32 + k}, v{Y + 48 + k}")
                a(f"s_add_u32 s39, s38, {(32 * Q + j) * 8192}")
                a(f"buffer_store_dwordx2 {vr(o, 2)}, v7, s[16:19], s39 offen")
        diag_end(a, opt, 3, 8, 30, 128)
        a("s_endpgm")
    else:
        T = 128
        for k in range(16):
            a(f"v_pk_add_f32 {vr(T + 2 * k, 2)}, {vr(Y + 4 * k, 2)}, {vr(Y + 4 * k + 2, 2)}")
        n = 16
        while n > 1:
            n //= 2
            for k in range(n):
                a(f"v_pk_add_f32 {vr(T + 2 * k, 2)}, {vr(T + 2 * k, 2)}, {vr(T + 2 * (k + n), 2)}")
        a(f"v_add_f32 v12, v{T}, v{T + 1}")
        allreduce_add(a, [12], [14])
        a(f"v_mul_f32 v12, {f32bits(-1.0 / 4096):#x}, v12")
        for k in range(8):
            a(f"v_mov_b32 v{160 + k}, 0")
        for k in range(32):
            t = T + 2 * (k % 8)
            ac = 160 + 2 * (k % 4)
            a(f"v_pk_add_f32 {vr(t, 2)}, {vr(Y + 2 * k, 2)}, v[12:13] op_sel_hi:[1,0]")
            a(f"v_pk_fma_f32 {vr(ac, 2)}, {vr(t, 2)}, {vr(t, 2)}, {vr(ac, 2)}")
        a("v_pk_add_f32 v[160:161], v[160:161], v[162:163]")
        a("v_pk_add_f32 v[164:165], v[164:165], v[166:167]")
        a("v_pk_add_f32 v[160:161], v[160:161], v[164:165]")
        a("v_add_f32 v13, v160, v161")
        allreduce_add(a, [13], [14])
        a("v_sub_f32 v12, 0, v12")
        a("v_mov_b32 v14, 0x7fc00000")
        a("v_cmp_eq_u32 vcc, -1, v12")
        a("v_cmp_eq_u32 s[48:49], -1, v13")
        a("s_nop 1")
        a("v_cndmask_b32 v12, v12, v14, vcc")
        a("v_cndmask_b32 v13, v13, v14, s[48:49]")
        a("s_lshl_b32 s46, s28, 2")
        a("s_lshr_b32 s47, s27, 1")
        a("s_add_u32 s46, s46, s47")
        a("s_lshl_b32 s46, s46, 10")
        a(f"s_add_u32 s46, s46, {ST2_OFF:#x}")
        a("s_and_b32 s47, s27, 1")
        a("s_lshl_b32 s47, s47, 6")
        a("s_add_u32 s47, s47, s29")
        a("s_add_u32 s47, s47, s30")
        a("s_lshl_b32 s47, s47, 3")
        a("s_add_u32 s47, s47, s46")
        a("v_mov_b32 v14, 0")
        a("s_mov_b64 exec, 1")
        a("buffer_store_dwordx2 v[12:13], v14, s[8:11], s47 offen sc0 sc1")
        a("s_mov_b64 exec, -1")
        diag_stamp(a, opt, 3)
        SC, SH = 32, 48
        a("s_waitcnt vmcnt(1)")
        for j in range(8):
            a(f"v_lshlrev_b32 v{SC + 2 * j}, 16, v{16 + j}")
            a(f"v_and_b32 v{SC + 1 + 2 * j}, 0xffff0000, v{16 + j}")
            a(f"v_lshlrev_b32 v{SH + 2 * j}, 16, v{24 + j}")
            a(f"v_and_b32 v{SH + 1 + 2 * j}, 0xffff0000, v{24 + j}")
        a("s_lshl_b32 s38, s28, 23")
        a("s_lshl_b32 s39, s27, 20")
        a("s_add_u32 s38, s38, s39")
        a("s_add_u32 s39, s29, s30")
        a("s_lshl_b32 s39, s39, 11")
        a("s_add_u32 s38, s38, s39")
        a(f"s_add_u32 s38, s38, {V2_OFF:#x}")
        a(f"s_mov_b32 s50, {opt.spin}")
        a.label(f"{L}poll")
        a("buffer_load_dwordx4 v[16:19], v2, s[8:11], s46 offen sc0 sc1")
        a("s_waitcnt vmcnt(0)")
        a("v_cmp_eq_u32 vcc, -1, v16")
        a("v_cmp_eq_u32 s[48:49], -1, v17")
        a("v_cmp_eq_u32 s[52:53], -1, v18")
        a("v_cmp_eq_u32 s[54:55], -1, v19")
        a("s_nop 1")
        a("s_or_b64 s[48:49], s[48:49], vcc")
        a("s_or_b64 s[52:53], s[52:53], s[54:55]")
        a("s_or_b64 s[48:49], s[48:49], s[52:53]")
        a(f"s_cbranch_scc0 {L}ready")
        a("s_sleep 1")
        a("s_sub_u32 s50, s50, 1")
        a("s_cmp_lg_u32 s50, 0")
        a(f"s_cbranch_scc1 {L}poll")
        a.label(f"{L}ready")
        diag_stamp(a, opt, 4)
        combine_stats(a, 16, 12, 13, 14, 15)
        a("v_sub_f32 v12, 0, v12")
        a("v_mov_b32 v14, v13")
        a(f"v_mov_b32 v16, {f32bits(-LOG2E):#x}")
        a("v_mov_b32 v18, 1.0")
        for k in range(8):
            a(f"v_pk_mul_f32 {vr(SC + 2 * k, 2)}, {vr(SC + 2 * k, 2)}, v[14:15] op_sel_hi:[1,0]")
        for k in range(8):
            a(f"v_pk_fma_f32 {vr(SH + 2 * k, 2)}, {vr(SC + 2 * k, 2)}, v[12:13], {vr(SH + 2 * k, 2)} op_sel_hi:[1,0,1]")
        E = 128
        for Q in range(2):
            for k in range(4):
                silu_block(a, Y + 16 * k + 8 * Q, 8, E + 8 * (k % 2), SC + 8 * Q, SH + 8 * Q, 16, 18)

            def store(xi, p, o, Q=Q):
                a(f"s_add_u32 s39, s38, {(Q << 19) + (xi << 17):#x}")
                a(f"buffer_store_dwordx4 {vr(o, 4)}, v2, s[8:11], s39 offen offset:{1024 * p}")
            v_transform(a, [Y + 16 * k + 8 * Q for k in range(4)], E + 16, 160 + 32 * Q, store)
        diag_end(a, opt, 2, 8, 30, 128)
        a("s_endpgm")
    a.label(f"{L}end")
    a("s_endpgm")
    return name, 256, 256, 131072, kernel_desc(name, 512, 96, accum=256)


def get_opt(argv=None):
    ap = argparse.ArgumentParser()
    ap.add_argument("-o", default="standalone__adm_resblock__diffusion.s")
    ap.add_argument("--spread", type=int, default=2)
    ap.add_argument("--diag", type=int, default=0)
    ap.add_argument("--spin", type=int, default=200000)
    return ap.parse_args(argv)


def emit(ks, a, path):
    out = HEADER
    for name, g, blk, lds, _ in ks:
        out += f"; @launch kernel={name} grid=({g},1,1) block=({blk},1,1) lds={lds}\n"
    out += '.amdgcn_target "amdgcn-amd-amdhsa--gfx950"\n.text\n'
    out += a.text()
    out += '.section .rodata,"a"\n'
    for k in ks:
        out += k[4]
    open(path, "w").write(out)


def main():
    opt = get_opt()
    a = Asm()
    ks = [gen_prep(a, opt), gen_xform(a, opt), gen_conv(a, 1, opt), gen_conv(a, 2, opt)]
    emit(ks, a, opt.o)


if __name__ == "__main__":
    main()
```

```python
import sys, argparse
from gen import Asm, vr, sr, srd, allreduce_add, kernel_header, kernel_desc, f32bits, HEADER, LOG2E
from gen2 import reg, silu_block, v_transform

V1_OFF = 0x0000000
V2_OFF = 0x1000000
U1_OFF = 0x2000000
U2_OFF = 0x3000000
LAYER_STRIDE = 0x1000000
ST_OFF = 0x2800000
FL_OFF = 0x2804000
EMB_OFF = 0x2810000
LDS_ST = 131072
W_LDS = 131072 + 256
DBG_OFF = 0x2900000
WS_USED = 0x3A00000
OOB = 0x80000000
X_BYTES = 2 * 512 * 64 * 64 * 2
W_BYTES = 512 * 512 * 9 * 2
U_BYTES = 8 * 16 * 4 * 12 * 1024
V_BYTES = 2 * X_BYTES
KNAME = "standalone__adm_resblock__diffusion_kernel"

S_WAVE = 3
R_WS, R_G, R_B, R_X, R_W, R_M, R_T = 4, 8, 12, 16, 20, 24, 28
P_X, P_T, P_G1, P_B1, P_W1, P_WE, P_G2, P_B2, P_W2, P_OUT, P_DBG, P_WS = [32 + 2 * i for i in range(12)]
S_MT, S_NT, S_B, S_Y0, S_LAY, S_TAG = 56, 57, 58, 59, 60, 61
S_V, S_V0, S_V5, S_U = 62, 63, 64, 65
S_LOFF = 66
S_XOFF = 67
S_WSRC = 68
S_UDST = 69
S_CNT = 71
S_T0, S_T1, S_T2, S_T3 = 72, 73, 74, 75
S_SEL0, S_SEL1 = 76, 77
S_STB = 78
S_VST = 79
S_FL = 86
S_UJOB = 87
S_SPIN = 94
S_WL = 95

SC1 = " sc1"
SYS = " sc0 sc1"
POLL = " sc1"


def allreduce32(a, r, t):
    for st in ["quad_perm:[1,0,3,2]", "quad_perm:[2,3,0,1]", "row_half_mirror", "row_mirror"]:
        a("s_nop 1")
        a(f"v_add_f32_dpp v{r}, v{r}, v{r} {st} row_mask:0xf bank_mask:0xf")
    a(f"v_mov_b32 v{t}, v{r}")
    a("s_nop 1")
    a(f"v_permlane16_swap_b32 v{r}, v{t}")
    a("s_nop 1")
    a(f"v_add_f32 v{r}, v{r}, v{t}")


def u_transform(a, Wd, T, O, H, vst, sdst, mod, nbuf=2, tbuf=2):
    def unpack(dst, e):
        src = Wd[e // 2]
        if e % 2 == 0:
            a(f"v_lshlrev_b32 v{dst}, 16, v{src}")
        else:
            a(f"v_and_b32 v{dst}, 0xffff0000, v{src}")
    for dy in range(3):
        ob = O + 16 * (dy % nbuf)
        for jj in range(4):
            t = T + 8 * (jj % tbuf)
            for dx in range(3):
                e1 = 18 * jj + 3 * dy + dx
                unpack(t + 2 * dx, e1)
                unpack(t + 2 * dx + 1, e1 + 9)
            for xi, dx in ((0, 0), (3, 2)):
                e1 = 18 * jj + 3 * dy + dx
                e2 = e1 + 9
                sel = S_SEL0 if e1 % 2 == 0 else S_SEL1
                a(f"v_perm_b32 v{ob + 4 * xi + jj}, v{Wd[e2 // 2]}, v{Wd[e1 // 2]}, s{sel}")
            a(f"v_pk_add_f32 {vr(t, 2)}, {vr(t, 2)}, {vr(t + 4, 2)}")
            a(f"v_pk_add_f32 {vr(t + 4, 2)}, {vr(t, 2)}, {vr(t + 2, 2)}")
            a(f"v_pk_add_f32 {vr(t + 6, 2)}, {vr(t, 2)}, {vr(t + 2, 2)} neg_lo:[0,1] neg_hi:[0,1]")
            a(f"v_cvt_pk_bf16_f32 v{ob + 4 + jj}, v{t + 4}, v{t + 5}")
            a(f"v_cvt_pk_bf16_f32 v{ob + 8 + jj}, v{t + 6}, v{t + 7}")
        for xi in range(4):
            a(f"s_add_u32 s{sdst + 1}, s{sdst}, {xi * 12288 + dy * 4096}")
            a(f"buffer_store_dwordx4 {vr(ob + 4 * xi, 4)}, v{vst}, {sr(R_WS, 4)}, s{sdst + 1} offen{mod}")


def w_addr(a, dst, t0, t1, t2, first):
    a(first)
    a(f"v_mul_u32_u24 v{t1}, 1821, v{t0}")
    a(f"v_lshrrev_b32 v{t1}, 16, v{t1}")
    a(f"v_mul_u32_u24 v{t2}, 36, v{t1}")
    a(f"v_sub_u32 v{t0}, v{t0}, v{t2}")
    a(f"v_and_b32 v{t2}, 12, v{t1}")
    a(f"v_add_u32 v{t1}, v{t1}, v{t2}")
    a(f"v_mul_u32_u24 v{t1}, 9216, v{t1}")
    a(f"v_lshl_add_u32 v{dst}, v{t0}, 4, v{t1}")


def gen(a, opt):
    name = KNAME
    kernel_header(a, name)
    VD = 15
    W4 = sr(R_WS, 4)

    def stamp(k, layered=True):
        if not opt.diag:
            return
        a("s_memtime s[88:89]")
        a("s_memrealtime s[90:91]")
        if layered:
            a(f"s_lshl_b32 s92, s{S_LAY}, 5")
            a(f"s_add_u32 s92, s92, {2 * k}")
        else:
            a(f"s_mov_b32 s92, {2 * k}")
        a("s_add_u32 s93, s92, 1")
        a("s_waitcnt lgkmcnt(0)")
        a("s_mov_b32 m0, s92")
        a(f"v_writelane_b32 v{VD}, s88, m0")
        a("s_mov_b32 m0, s93")
        a(f"v_writelane_b32 v{VD}, s90, m0")

    a("s_cmp_ge_u32 s2, 256")
    a("s_cbranch_scc1 L_end")
    a("s_load_dwordx16 s[32:47], s[0:1], 0")
    a("s_load_dwordx8 s[48:55], s[0:1], 64")
    a("s_memrealtime s[80:81]")
    if opt.diag:
        a(f"v_mov_b32 v{VD}, 0")
        stamp(0, False)
    a("v_lshrrev_b32 v1, 6, v0")
    a("v_and_b32 v0, 63, v0")
    a(f"s_and_b32 s{S_T0}, s2, 7")
    a(f"s_lshr_b32 s{S_T1}, s2, 3")
    a(f"v_readfirstlane_b32 s{S_WAVE}, v1")
    a(f"s_and_b32 s{S_MT}, s{S_T0}, 3")
    a(f"s_lshl_b32 s{S_MT}, s{S_MT}, 3")
    a(f"s_and_b32 s{S_T2}, s{S_T1}, 7")
    a(f"s_add_u32 s{S_MT}, s{S_MT}, s{S_T2}")
    a(f"s_lshr_b32 s{S_NT}, s{S_T0}, 2")
    a(f"s_lshl_b32 s{S_NT}, s{S_NT}, 2")
    a(f"s_lshr_b32 s{S_T2}, s{S_T1}, 3")
    a(f"s_add_u32 s{S_NT}, s{S_NT}, s{S_T2}")
    a(f"s_lshr_b32 s{S_B}, s{S_MT}, 4")
    a(f"s_and_b32 s{S_Y0}, s{S_MT}, 15")
    a(f"s_lshl_b32 s{S_Y0}, s{S_Y0}, 2")
    a("v_lshrrev_b32 v5, 4, v0")
    a("v_and_b32 v6, 15, v0")
    a("v_lshlrev_b32 v7, 16, v5")
    a("v_lshl_add_u32 v7, v6, 3, v7")
    a("v_mov_b32 v14, 0")
    a(f"s_lshl_b32 s{S_XOFF}, s{S_B}, 22")
    a(f"s_lshl_b32 s{S_T0}, s{S_NT}, 19")
    a(f"s_add_u32 s{S_XOFF}, s{S_XOFF}, s{S_T0}")
    a(f"s_add_u32 s{S_T3}, s{S_Y0}, s{S_WAVE}")
    a(f"s_lshl_b32 s{S_T1}, s{S_T3}, 7")
    a(f"s_add_u32 s{S_XOFF}, s{S_XOFF}, s{S_T1}")
    a(f"s_or_b32 s{S_T2}, s2, s{S_WAVE}")
    a("s_waitcnt lgkmcnt(0)")
    srd(a, R_M, P_DBG, 256)
    a(f"s_cmp_lg_u32 s{S_T2}, 0")
    a("s_cbranch_scc1 L_noleader")
    a("s_or_b32 s80, s80, 1")
    a("v_mov_b32 v12, s80")
    a("s_mov_b64 exec, 1")
    a(f"buffer_store_dword v12, v14, {sr(R_M, 4)}, 0 offen{SYS}")
    a("s_mov_b64 exec, -1")
    a.label("L_noleader")
    srd(a, R_X, P_X, X_BYTES)
    XR = 16

    def x_loads(sbase):
        l = []
        for k in range(16):
            Q, j = k // 8, k % 8
            l.append([f"s_add_u32 s{S_T1}, s{sbase}, {(32 * Q + j) * 8192}",
                      f"buffer_load_dwordx2 {vr(XR + 2 * k, 2)}, v7, {sr(R_X, 4)}, s{S_T1} offen"])
        return l
    for l in x_loads(S_XOFF):
        a(l[0]); a(l[1])
    a(f"s_mov_b32 s{S_LAY}, 0")
    a(f"s_mov_b32 s{S_LOFF}, 0")
    a(f"s_mov_b32 s{S_FL}, {FL_OFF:#x}")
    a("v_lshlrev_b32 v2, 4, v0")
    a("v_add_u32 v3, 4096, v2")
    a("v_add_u32 v4, 8192, v2")
    a("v_lshlrev_b32 v11, 4, v5")
    srd(a, R_WS, P_WS, WS_USED)
    srd(a, R_G, P_G1, 1024)
    srd(a, R_B, P_B1, 1024)
    srd(a, R_W, P_W1, W_BYTES)
    srd(a, R_T, P_T, 2 * 768 * 2)
    GB = 48
    a(f"s_lshl_b32 s{S_T0}, s{S_NT}, 7")

    def gb_loads():
        l = []
        for Q in range(2):
            l.append(f"buffer_load_dwordx4 {vr(GB + 4 * Q, 4)}, v11, {sr(R_G, 4)}, s{S_T0} offen offset:{64 * Q}")
            l.append(f"buffer_load_dwordx4 {vr(GB + 8 + 4 * Q, 4)}, v11, {sr(R_B, 4)}, s{S_T0} offen offset:{64 * Q}")
        return l
    for l in gb_loads():
        a(l)
    a(f"s_lshl_b32 s{S_VST}, s{S_B}, 23")
    a(f"s_lshl_b32 s{S_T1}, s{S_NT}, 19")
    a(f"s_add_u32 s{S_VST}, s{S_VST}, s{S_T1}")
    a(f"s_lshl_b32 s{S_T1}, s{S_T3}, 11")
    a(f"s_add_u32 s{S_VST}, s{S_VST}, s{S_T1}")
    a(f"s_lshl_b32 s{S_T0}, s{S_MT}, 2")
    a(f"s_add_u32 s{S_T0}, s{S_T0}, s{S_WAVE}")
    a(f"s_lshl_b32 s{S_T1}, s{S_T0}, 6")
    a(f"s_lshl_b32 s{S_T2}, s{S_NT}, 3")
    a(f"s_add_u32 s{S_T1}, s{S_T1}, s{S_T2}")
    a(f"v_mov_b32 v12, s{S_T1}")
    a(f"s_lshl_b32 s{S_T1}, s{S_T0}, 3")
    a(f"s_lshl_b32 s{S_T2}, s{S_NT}, 10")
    a(f"s_add_u32 s{S_T1}, s{S_T1}, s{S_T2}")
    a(f"s_add_u32 s{S_T1}, s{S_T1}, 16384")
    a(f"v_writelane_b32 v12, s{S_T1}, 1")
    a("v_mul_u32_u24 v8, 576, v6")
    a("v_mul_u32_u24 v9, 144, v5")
    a(f"s_and_b32 s{S_WL}, s{S_WAVE}, 1")
    a(f"s_mul_i32 s{S_WL}, s{S_WL}, 9216")
    a(f"s_add_u32 s{S_WL}, s{S_WL}, {W_LDS}")
    a(f"v_add3_u32 v13, v8, v9, s{S_WL}")
    a(f"s_lshl_b32 s{S_T0}, s{S_MT}, 1")
    a(f"s_and_b32 s{S_T1}, s{S_WAVE}, 1")
    a(f"s_add_u32 s{S_T0}, s{S_T0}, s{S_T1}")
    a(f"s_lshr_b32 s{S_T1}, s{S_T0}, 4")
    a(f"s_and_b32 s{S_T0}, s{S_T0}, 15")
    a(f"s_lshr_b32 s{S_T2}, s{S_T1}, 1")
    a(f"s_lshl_b32 s{S_T2}, s{S_T2}, 5")
    a(f"s_and_b32 s{S_T3}, s{S_T1}, 1")
    a(f"s_lshl_b32 s{S_T3}, s{S_T3}, 2")
    a(f"s_add_u32 s{S_T2}, s{S_T2}, s{S_T3}")
    a(f"s_lshl_b32 s{S_T3}, s{S_NT}, 6")
    a(f"s_add_u32 s{S_T2}, s{S_T2}, s{S_T3}")
    a(f"s_mul_i32 s{S_WSRC}, s{S_T2}, 9216")
    a(f"s_mul_i32 s{S_T3}, s{S_T0}, 576")
    a(f"s_add_u32 s{S_WSRC}, s{S_WSRC}, s{S_T3}")
    WD = 200
    EW, ER = 168, 180
    def w1_loads():
        for k in range(9):
            w_addr(a, 236, 8, 9, 10, f"v_add_u32 v8, {64 * k}, v0")
            a(f"s_add_u32 m0, s{S_WL}, {1024 * k}")
            a("s_nop 0")
            a(f"buffer_load_dwordx4 v236, {sr(R_W, 4)}, s{S_WSRC} offen lds")

    a(f"s_cmp_ge_u32 s{S_WAVE}, 2")
    a("s_cbranch_scc1 L_role_b")
    nrole_a = 0
    if opt.w1pos == 0:
        w1_loads(); nrole_a += 9
    a.label("L_role_b")
    a(f"s_and_b32 s{S_T2}, s{S_T0}, 1")
    a(f"s_lshl_b32 s{S_T2}, s{S_T2}, 3")
    a(f"s_lshr_b32 s{S_T0}, s{S_T0}, 1")
    a(f"s_add_u32 s{S_T0}, s{S_T0}, s{S_T2}")
    a(f"s_lshl_b32 s{S_UDST}, s{S_NT}, 4")
    a(f"s_add_u32 s{S_UDST}, s{S_UDST}, s{S_T0}")
    a(f"s_mul_i32 s{S_UDST}, s{S_UDST}, 49152")
    a(f"s_lshl_b32 s{S_T1}, s{S_T1}, 10")
    a(f"s_add_u32 s{S_UDST}, s{S_UDST}, s{S_T1}")
    a(f"s_add_u32 s{S_UDST}, s{S_UDST}, {U1_OFF:#x}")
    a(f"s_cmp_lg_u32 s{S_WAVE}, 2")
    a("s_cbranch_scc1 L_role_c")
    srd(a, R_W, P_WE, 768 * 512 * 2)
    a("v_lshrrev_b32 v9, 3, v0")
    a("v_and_b32 v8, 7, v0")
    a("v_lshlrev_b32 v8, 4, v8")
    a("v_lshl_add_u32 v8, v9, 10, v8")
    a("v_lshlrev_b32 v9, 1, v9")
    a(f"s_mul_i32 s{S_T0}, s{S_MT}, 24576")
    a(f"s_lshl_b32 s{S_T1}, s{S_NT}, 7")
    a(f"s_add_u32 s{S_T0}, s{S_T0}, s{S_T1}")
    a(f"s_mul_i32 s{S_T1}, s{S_MT}, 48")
    for i in range(3):
        a(f"buffer_load_dwordx4 {vr(EW + 4 * i, 4)}, v8, {sr(R_W, 4)}, s{S_T0} offen")
        if i < 2:
            a(f"s_add_u32 s{S_T0}, s{S_T0}, 8192")
    for b in range(2):
        for i in range(3):
            a(f"buffer_load_ushort v{ER + 3 * b + i}, v9, {sr(R_T, 4)}, s{S_T1} offen offset:{1536 * b + 16 * i}")
    a.label("L_role_c")
    a(f"s_mov_b32 s{S_SEL0}, 0x07060100")
    a(f"s_mov_b32 s{S_SEL1}, 0x05040302")
    a(f"s_lshl_b32 s{S_STB}, s{S_B}, 2")
    a(f"s_lshr_b32 s{S_T0}, s{S_NT}, 1")
    a(f"s_add_u32 s{S_STB}, s{S_STB}, s{S_T0}")
    a(f"s_lshl_b32 s{S_STB}, s{S_STB}, 11")
    a(f"s_add_u32 s{S_STB}, s{S_STB}, {ST_OFF:#x}")
    a("v_lshrrev_b32 v8, 3, v0")
    a("v_min_u32 v8, 5, v8")
    a(f"v_add_u32 v9, s{S_Y0}, v8")
    a("v_subrev_u32 v9, 1, v9")
    a("v_med3_i32 v9, v9, 0, 63")
    a(f"s_lshl_b32 s{S_T0}, s{S_B}, 6")
    a(f"v_add_u32 v9, s{S_T0}, v9")
    a("v_lshlrev_b32 v9, 6, v9")
    a("v_and_b32 v8, 7, v0")
    a("v_lshl_add_u32 v1, v8, 3, v9")
    a(f"s_cmp_lt_u32 s{S_WAVE}, 2")
    a(f"s_cselect_b32 s{S_UJOB}, 1, 0")
    a(f"s_mov_b32 s{S_TAG}, 0")
    a(f"s_cmp_eq_u32 s{S_WAVE}, 3")
    a("s_cbranch_scc1 L_role_d")
    a(f"s_cmp_eq_u32 s{S_WAVE}, 2")
    a("s_cbranch_scc1 L_role_e")
    a(f"s_waitcnt vmcnt({4 + nrole_a})")
    if opt.w1pos == 1:
        w1_loads()
    a("s_branch L_role_done")
    a.label("L_role_e")
    nwarm = 0
    if opt.warm:
        a("v_and_b32 v8, 0x1ff, v2")
        a(f"s_lshl_b32 s{S_T1}, s{S_NT}, 10")
        for L in range(2):
            a(f"s_add_u32 s{S_T0}, s{S_STB}, {L * LAYER_STRIDE:#x}")
            a(f"buffer_load_dword v190, v8, {W4}, s{S_T0} offen{POLL}")
            for off in (0, 8192):
                a(f"s_mov_b32 s{S_T0}, {FL_OFF + L * LAYER_STRIDE + off:#x}")
                a(f"buffer_load_dword v190, v1, {W4}, s{S_T0} offen{POLL}")
            a(f"s_add_u32 s{S_T0}, s{S_T1}, {FL_OFF + L * LAYER_STRIDE + 16384:#x}")
            a(f"buffer_load_dword v190, v2, {W4}, s{S_T0} offen{POLL}")
            nwarm += 4
    a(f"s_waitcnt vmcnt({13 + nwarm})")
    a("s_branch L_role_done")
    a.label("L_role_d")
    a(f"buffer_load_dword v169, v14, {sr(R_M, 4)}, 0 offen{POLL}")
    a("s_waitcnt vmcnt(5)")
    a(f"buffer_load_dword v168, v14, {sr(R_M, 4)}, 0 offen{POLL}")
    a.label("L_role_done")
    Y = 64
    for k in range(16):
        for p in range(2):
            a(f"v_lshlrev_b32 v{Y + 16 * (2 * p) + k}, 16, v{XR + 2 * k + p}")
            a(f"v_and_b32 v{Y + 16 * (2 * p + 1) + k}, 0xffff0000, v{XR + 2 * k + p}")

    a.label("L_layer")
    stamp(1)
    T = 128
    for k in range(16):
        a(f"v_pk_add_f32 {vr(T + 2 * k, 2)}, {vr(Y + 4 * k, 2)}, {vr(Y + 4 * k + 2, 2)}")
    n = 16
    while n > 1:
        n //= 2
        for k in range(n):
            a(f"v_pk_add_f32 {vr(T + 2 * k, 2)}, {vr(T + 2 * k, 2)}, {vr(T + 2 * (k + n), 2)}")
    a(f"v_add_f32 v8, v{T}, v{T + 1}")
    allreduce_add(a, [8], [10])
    a(f"v_mul_f32 v8, {f32bits(-1.0 / 4096):#x}, v8")
    for k in range(8):
        a(f"v_mov_b32 v{160 + k}, 0")
    for k in range(32):
        t = T + 2 * (k % 8)
        ac = 160 + 2 * (k % 4)
        a(f"v_pk_add_f32 {vr(t, 2)}, {vr(Y + 2 * k, 2)}, v[8:9] op_sel_hi:[1,0]")
        a(f"v_pk_fma_f32 {vr(ac, 2)}, {vr(t, 2)}, {vr(t, 2)}, {vr(ac, 2)}")
    a("v_pk_add_f32 v[160:161], v[160:161], v[162:163]")
    a("v_pk_add_f32 v[164:165], v[164:165], v[166:167]")
    a("v_pk_add_f32 v[160:161], v[160:161], v[164:165]")
    a("v_add_f32 v9, v160, v161")
    allreduce_add(a, [9], [10])
    a(f"s_lshl_b32 s{S_T0}, s{S_WAVE}, 3")
    a(f"s_add_u32 s{S_T0}, s{S_T0}, {LDS_ST}")
    a(f"v_mov_b32 v10, s{S_T0}")
    a("s_mov_b64 exec, 1")
    a("ds_write_b64 v10, v[8:9]")
    a("s_mov_b64 exec, -1")
    a(f"v_mov_b32 v10, {LDS_ST}")
    a("s_waitcnt lgkmcnt(0)")
    a("s_barrier")
    stamp(2)
    a(f"s_cmp_lg_u32 s{S_WAVE}, 3")
    a("s_cbranch_scc1 L_side_a")
    a("ds_read_b128 v[128:131], v10")
    a("ds_read_b128 v[132:135], v10 offset:16")
    a(f"s_cmp_lg_u32 s{S_TAG}, 0")
    a("s_cbranch_scc1 L_havetag")
    a("s_waitcnt vmcnt(1)")
    a(f"v_readfirstlane_b32 s{S_TAG}, v169")
    a(f"s_mov_b32 s{S_CNT}, {opt.spin}")
    a("s_nop 2")
    a(f"s_cmp_lg_u32 s{S_TAG}, 0")
    a("s_cbranch_scc1 L_havetag")
    a.label("L_npoll")
    a("s_waitcnt vmcnt(0)")
    a(f"v_readfirstlane_b32 s{S_TAG}, v168")
    a(f"s_sub_u32 s{S_CNT}, s{S_CNT}, 1")
    a("s_nop 2")
    a(f"s_cmp_lg_u32 s{S_TAG}, 0")
    a("s_cbranch_scc1 L_havetag")
    a(f"buffer_load_dword v168, v14, {sr(R_M, 4)}, 0 offen{POLL}")
    a(f"s_cmp_lg_u32 s{S_CNT}, 0")
    a("s_cbranch_scc1 L_npoll")
    a(f"s_mov_b32 s{S_TAG}, 1")
    a.label("L_havetag")
    a(f"s_and_b32 s{S_T0}, s{S_NT}, 1")
    a(f"s_lshl_b32 s{S_T0}, s{S_T0}, 6")
    a(f"s_add_u32 s{S_T0}, s{S_T0}, s{S_Y0}")
    a(f"s_lshl_b32 s{S_T0}, s{S_T0}, 2")
    a(f"s_add_u32 s{S_T0}, s{S_T0}, s{S_STB}")
    a("s_waitcnt lgkmcnt(0)")
    a("v_add_f32 v136, v128, v130")
    a("v_add_f32 v137, v132, v134")
    a("v_add_f32 v136, v136, v137")
    a(f"v_mul_f32 v136, {f32bits(0.25):#x}, v136")
    a("v_add_f32 v138, v129, v131")
    a("v_add_f32 v137, v133, v135")
    a("v_add_f32 v138, v138, v137")
    for k in range(4):
        a(f"v_sub_f32 v{128 + 2 * k}, v{128 + 2 * k}, v136")
    a("v_mul_f32 v140, v128, v128")
    for k in range(1, 4):
        a(f"v_fmac_f32 v140, v{128 + 2 * k}, v{128 + 2 * k}")
    a(f"v_fmac_f32 v138, {f32bits(4096.0):#x}, v140")
    a(f"v_mov_b32 v137, s{S_TAG}")
    a(f"v_mov_b32 v139, s{S_TAG}")
    a("s_mov_b64 exec, 1")
    a(f"buffer_store_dwordx4 v[136:139], v14, {W4}, s{S_T0} offen{SYS}")
    a("s_mov_b64 exec, -1")
    stamp(11)
    a("v_and_b32 v8, 0x1ff, v2")
    a(f"s_mov_b32 s{S_CNT}, {opt.spin}")
    a.label("L_spoll")
    a(f"buffer_load_dwordx4 v[184:187], v8, {W4}, s{S_STB} offen{POLL}")
    a("s_waitcnt vmcnt(0)")
    a(f"v_cmp_ne_u32 vcc, s{S_TAG}, v185")
    a(f"v_cmp_ne_u32 s[80:81], s{S_TAG}, v187")
    a("s_nop 1")
    a("s_or_b64 s[80:81], s[80:81], vcc")
    a("s_cbranch_scc0 L_sready")
    a(f"s_sleep {opt.sleep}")
    a(f"s_sub_u32 s{S_CNT}, s{S_CNT}, 1")
    a(f"s_cmp_lg_u32 s{S_CNT}, 0")
    a("s_cbranch_scc1 L_spoll")
    a.label("L_sready")
    a("v_mov_b32 v128, v184")
    allreduce32(a, 128, 130)
    a(f"v_mul_f32 v128, {f32bits(1.0 / 32):#x}, v128")
    a("v_sub_f32 v184, v184, v128")
    a("v_mul_f32 v184, v184, v184")
    a(f"v_fmac_f32 v186, {f32bits(16384.0):#x}, v184")
    allreduce32(a, 186, 130)
    a(f"v_mov_b32 v130, {f32bits(1e-5):#x}")
    a(f"v_fmac_f32 v130, {f32bits(1.0 / 524288):#x}, v186")
    a("v_rsq_f32 v129, v130")
    a("s_nop 0")
    a("v_mul_f32 v131, v130, v129")
    a("v_mul_f32 v131, v131, v129")
    a(f"v_mov_b32 v130, {f32bits(1.5):#x}")
    a("v_fmac_f32 v130, -0.5, v131")
    a("v_mul_f32 v129, v129, v130")
    a(f"v_mov_b32 v130, s{S_TAG}")
    a(f"v_mov_b32 v131, s{S_TAG}")
    a("s_mov_b64 exec, 1")
    a("ds_write_b128 v10, v[128:131] offset:32")
    a("s_mov_b64 exec, -1")
    a("s_branch L_side_done")
    a.label("L_side_a")
    a(f"s_cmp_lg_u32 s{S_UJOB}, 0")
    a("s_cbranch_scc1 L_side_u")
    a("s_waitcnt vmcnt(0)")
    a(f"s_cmp_lg_u32 s{S_LAY}, 0")
    a("s_cbranch_scc1 L_side_done")
    a("s_branch L_side_b")
    a.label("L_side_u")
    a("s_waitcnt vmcnt(0)")
    for k in range(9):
        a(f"ds_read_b128 {vr(WD + 4 * k, 4)}, v13 offset:{16 * k}")
    a("s_waitcnt lgkmcnt(0)")
    u_transform(a, list(range(WD, WD + 36)), 132, 148, 8, 2, S_UDST, SC1)
    a("s_branch L_side_done")
    a.label("L_side_b")
    EA, EE = 132, 148
    for i in range(6):
        a(f"v_lshlrev_b32 v{ER + i}, 16, v{ER + i}")
    for i in range(6):
        a(f"v_mul_f32 v{EE + i}, {f32bits(-LOG2E):#x}, v{ER + i}")
    for i in range(6):
        a(f"v_exp_f32 v{EE + i}, v{EE + i}")
    for i in range(6):
        a(f"v_add_f32 v{EE + i}, 1.0, v{EE + i}")
    for i in range(6):
        a(f"v_rcp_f32 v{EE + i}, v{EE + i}")
    for i in range(6):
        a(f"v_add_f32 v{ER + i}, v{ER + i}, v{ER + i}")
    for i in range(6):
        a(f"v_mul_f32 v{ER + i}, v{ER + i}, v{EE + i}")
    for i in range(3):
        e = EE + 8 * (i % 2)
        for d in range(4):
            a(f"v_lshlrev_b32 v{e + 2 * d}, 16, v{EW + 4 * i + d}")
            a(f"v_and_b32 v{e + 2 * d + 1}, 0xffff0000, v{EW + 4 * i + d}")
        for b in range(2):
            for c in range(8):
                op = "v_mul_f32" if i == 0 else "v_fmac_f32"
                a(f"{op} v{EA + 8 * b + c}, v{ER + 3 * b + i}, v{e + c}")
    for r in range(16):
        a(f"v_add_f32_dpp v{EA + r}, v{EA + r}, v{EA + r} row_ror:8 row_mask:0xf bank_mask:0xf")
    a("s_nop 0")
    for c in range(8):
        a(f"v_permlane16_swap_b32 v{EA + c}, v{EA + 8 + c}")
    for c in range(8):
        a(f"v_add_f32 v{EA + c}, v{EA + c}, v{EA + 8 + c}")
    for c in range(4):
        a(f"v_permlane32_swap_b32 v{EA + c}, v{EA + 4 + c}")
    a("s_nop 0")
    for c in range(4):
        a(f"v_add_f32 v{EA + c}, v{EA + c}, v{EA + 4 + c}")
    a("v_and_b32 v8, 7, v0")
    a("v_lshlrev_b32 v8, 5, v8")
    a("v_and_b32 v9, 16, v0")
    a("v_lshl_add_u32 v8, v9, 4, v8")
    a("v_lshrrev_b32 v9, 5, v0")
    a("v_lshl_add_u32 v8, v9, 4, v8")
    a(f"s_lshl_b32 s{S_T0}, s{S_NT}, 5")
    a(f"s_add_u32 s{S_T0}, s{S_T0}, s{S_MT}")
    a(f"s_lshl_b32 s{S_T0}, s{S_T0}, 9")
    a(f"s_add_u32 s{S_T0}, s{S_T0}, {EMB_OFF:#x}")
    a("s_mov_b32 exec_lo, 0x00ff00ff")
    a("s_mov_b32 exec_hi, 0x00ff00ff")
    a(f"buffer_store_dwordx4 {vr(EA, 4)}, v8, {W4}, s{S_T0} offen{SC1}")
    a("s_mov_b64 exec, -1")
    a.label("L_side_done")
    SC, SH = 224, 240
    stamp(3)
    for j in range(8):
        a(f"v_lshlrev_b32 v{SC + 2 * j}, 16, v{GB + j}")
        a(f"v_and_b32 v{SC + 1 + 2 * j}, 0xffff0000, v{GB + j}")
        a(f"v_lshlrev_b32 v{SH + 2 * j}, 16, v{GB + 8 + j}")
        a(f"v_and_b32 v{SH + 1 + 2 * j}, 0xffff0000, v{GB + 8 + j}")
    a(f"v_mov_b32 v52, {f32bits(-LOG2E):#x}")
    a("v_mov_b32 v54, 1.0")
    a("s_waitcnt lgkmcnt(0)")
    a("s_barrier")
    a("ds_read_b128 v[48:51], v10 offset:32")
    stamp(4)
    a("s_waitcnt lgkmcnt(0)")
    a(f"v_readfirstlane_b32 s{S_TAG}, v50")
    for k in range(8):
        a(f"v_pk_mul_f32 {vr(SC + 2 * k, 2)}, {vr(SC + 2 * k, 2)}, v[48:49] op_sel:[0,1] op_sel_hi:[1,1]")
    for k in range(8):
        a(f"v_pk_fma_f32 {vr(SH + 2 * k, 2)}, {vr(SC + 2 * k, 2)}, v[48:49], {vr(SH + 2 * k, 2)} op_sel_hi:[1,0,1]")
    E = 128
    q1_stores = []
    for Q in range(2):
        for k in range(4):
            silu_block(a, Y + 16 * k + 8 * Q, 8, E + 8 * (k % 2), SC + 8 * Q, SH + 8 * Q, 52, 54)
        if Q == 1:
            a("s_waitcnt vmcnt(0)")
            a("s_mov_b64 exec, 3")
            a(f"buffer_store_dwordx2 v[50:51], v12, {W4}, s{S_FL} offen{SYS}")
            a("s_mov_b64 exec, -1")
            stamp(5)

        def store(xi, p, o, Q=Q):
            l = [f"s_add_u32 s{S_T0}, s{S_VST}, {(Q << 22) + (xi << 17):#x}",
                 f"buffer_store_dwordx4 {vr(o, 4)}, v2, {W4}, s{S_T0} offen offset:{1024 * p}{SC1}"]
            if Q == 0 or not opt.defer3:
                a(l[0]); a(l[1])
            else:
                q1_stores.extend(l)
        v_transform(a, [Y + 16 * k + 8 * Q for k in range(4)], E + 16, 160 if Q == 0 else 16, store)
    if opt.defer3:
        a(f"s_cmp_eq_u32 s{S_WAVE}, 3")
        a("s_cbranch_scc1 L_q1skip")
        for l in q1_stores:
            a(l)
        a.label("L_q1skip")
    stamp(6)
    TAGP, HP, FLD = 86, 84, 88
    a(f"v_mov_b32 v{TAGP}, v50")
    a(f"v_mov_b32 v{TAGP + 1}, v50")
    a(f"s_lshl_b32 s{S_V}, s{S_B}, 23")
    a(f"s_lshl_b32 s{S_T0}, s{S_WAVE}, 17")
    a(f"s_add_u32 s{S_V}, s{S_V}, s{S_T0}")
    a(f"s_lshl_b32 s{S_T0}, s{S_Y0}, 11")
    a(f"s_add_u32 s{S_V}, s{S_V}, s{S_T0}")
    a(f"s_add_u32 s{S_V}, s{S_V}, s{S_LOFF}")
    a(f"s_sub_u32 s{S_V0}, s{S_V}, 2048")
    a(f"s_cmp_eq_u32 s{S_Y0}, 0")
    a(f"s_cselect_b32 s{S_V0}, {OOB:#x}, s{S_V0}")
    a(f"s_add_u32 s{S_V5}, s{S_V}, 8192")
    a(f"s_cmp_eq_u32 s{S_Y0}, 60")
    a(f"s_cselect_b32 s{S_V5}, {OOB:#x}, s{S_V5}")
    a(f"s_mul_i32 s{S_U}, s{S_NT}, {16 * 49152}")
    a(f"s_mul_i32 s{S_T0}, s{S_WAVE}, 12288")
    a(f"s_add_u32 s{S_U}, s{S_U}, s{S_T0}")
    a(f"s_add_u32 s{S_U}, s{S_U}, s{S_LOFF}")
    a(f"s_add_u32 s{S_U}, s{S_U}, {U1_OFF:#x}")
    a(f"s_lshl_b32 s{S_T3}, s{S_NT}, 14")
    a(f"s_lshl_b32 s{S_T0}, s{S_B}, 8")
    a(f"s_add_u32 s{S_T3}, s{S_T3}, s{S_T0}")
    a(f"s_add_u32 s{S_T3}, s{S_T3}, {EMB_OFF:#x}")
    a(f"s_add_u32 s{S_T2}, s{S_T3}, 8192")
    a("v_lshlrev_b32 v10, 5, v5")
    a("v_lshl_add_u32 v10, v6, 9, v10")
    ACC = 128
    for k in range(0, 128, 2):
        a(f"v_pk_mov_b32 {vr(ACC + k, 2)}, 0, 0")
    a(f"s_cmp_lg_u32 s{S_WAVE}, 3")
    a("s_cbranch_scc0 L_fpoll0")
    for k in range(9):
        w_addr(a, 64 + k, 56, 57, 58, f"v_add_u32 v56, {64 * k}, v0")
    a("s_branch L_fready")
    a.label("L_fpoll0")
    a(f"s_lshl_b32 s{S_T1}, s{S_NT}, 10")
    a(f"s_add_u32 s{S_T1}, s{S_T1}, s{S_FL}")
    a(f"s_add_u32 s{S_T1}, s{S_T1}, 16384")
    a(f"s_mov_b32 s{S_CNT}, {opt.spin}")
    a.label("L_fpoll")
    a(f"buffer_load_dwordx2 v[56:57], v1, {W4}, s{S_FL} offen{POLL}")
    a(f"buffer_load_dwordx4 v[60:63], v2, {W4}, s{S_T1} offen{POLL}")
    a("s_waitcnt vmcnt(0)")
    for r in (56, 57, 60, 61, 62, 63):
        a(f"v_xor_b32 v{r}, s{S_TAG}, v{r}")
    a("v_or3_b32 v56, v56, v57, v60")
    a("v_or3_b32 v61, v61, v62, v63")
    a("v_or_b32 v56, v56, v61")
    a("v_cmp_ne_u32 vcc, 0, v56")
    a("s_nop 1")
    a("s_cmp_eq_u64 vcc, 0")
    a("s_cbranch_scc1 L_fready")
    a(f"s_sleep {opt.sleep}")
    a(f"s_sub_u32 s{S_CNT}, s{S_CNT}, 1")
    a(f"s_cmp_lg_u32 s{S_CNT}, 0")
    a("s_cbranch_scc1 L_fpoll")
    a.label("L_fready")
    a("s_barrier")
    stamp(7)

    def acc(i, p, q):
        return ACC + ((i * 2 + p) * 4 + q) * 4

    def F(S, k):
        n = S * 24 + k
        return 256 + 4 * n if n < 64 else 96 + 4 * (n - 64)

    def fV(S, r, p):
        return F(S, r * 2 + p)

    def fU(S, dy, q):
        return F(S, 12 + dy * 4 + q)

    def ldV(S, r, p):
        if r == 0:
            return f"buffer_load_dwordx4 {reg(fV(S, r, p))}, v2, {W4}, s{S_V0} offen offset:{p * 1024}{SC1}"
        if r == 5:
            return f"buffer_load_dwordx4 {reg(fV(S, r, p))}, v2, {W4}, s{S_V5} offen offset:{p * 1024}{SC1}"
        kk = (r - 1) * 2 + p
        return f"buffer_load_dwordx4 {reg(fV(S, r, p))}, v{2 + kk // 4}, {W4}, s{S_V} offen offset:{(kk % 4) * 1024}{SC1}"

    def ldU(S, dy, q):
        return f"buffer_load_dwordx4 {reg(fU(S, dy, q))}, v{2 + dy}, {W4}, s{S_U} offen offset:{q * 1024}{SC1}"

    def stage_loads(S):
        l = [ldU(S, 0, 0), ldV(S, 0, 0), ldV(S, 0, 1), ldV(S, 1, 0), ldV(S, 1, 1), ldV(S, 2, 0), ldV(S, 2, 1),
             ldV(S, 3, 0), ldV(S, 3, 1), ldU(S, 0, 1), ldU(S, 0, 2), ldU(S, 0, 3)]
        l += [ldU(S, 1, q) for q in range(4)] + [ldV(S, 4, 0), ldV(S, 4, 1)]
        l += [ldU(S, 2, q) for q in range(4)] + [ldV(S, 5, 0), ldV(S, 5, 1)]
        return l
    ADV = [f"s_add_u32 s{S_V}, s{S_V}, {1 << 19:#x}", f"s_add_u32 s{S_V0}, s{S_V0}, {1 << 19:#x}",
           f"s_add_u32 s{S_V5}, s{S_V5}, {1 << 19:#x}", f"s_add_u32 s{S_U}, s{S_U}, 49152"]

    def mf(S, dy, q, i, p):
        c = vr(acc(i, p, q), 4)
        return f"v_mfma_f32_16x16x32_bf16 {c}, {reg(fU(S, dy, q))}, {reg(fV(S, i + dy, p))}, {c}"

    a(f"s_lshl_b32 s{S_T0}, s{S_LAY}, 2")
    a(f"s_add_u32 s{S_SPIN}, s{S_T0}, s{S_WAVE}")
    a(f"s_cmp_lg_u32 s{S_SPIN}, 1")
    a("s_cbranch_scc1 L_noemb1")
    for h in range(2):
        for q in range(4):
            a(f"buffer_load_dwordx4 {vr(ACC + 16 * h + 4 * q, 4)}, v10, {W4}, s{S_T3 if h == 0 else S_T2} offen offset:{128 * (q >> 1) + 16 * (q & 1)}{SC1}")
    a.label("L_noemb1")
    for S in range(2):
        for l in stage_loads(S):
            a(l)
        for x in ADV:
            a(x)
        if S == 0 and opt.defer3:
            a(f"s_cmp_lg_u32 s{S_WAVE}, 3")
            a("s_cbranch_scc1 L_q1skip2")
            for l in q1_stores:
                a(l)
            a.label("L_q1skip2")
    a(f"s_cmp_lg_u32 s{S_SPIN}, 1")
    a("s_cbranch_scc1 L_noemb2")
    a("s_waitcnt vmcnt(48)")
    for k in range(0, 16, 2):
        a(f"v_pk_add_f32 {vr(ACC + k, 2)}, {vr(ACC + k, 2)}, {vr(ACC + 16 + k, 2)}")
    for st in ("quad_perm:[1,0,3,2]", "quad_perm:[2,3,0,1]", "row_half_mirror", "row_mirror"):
        for k in range(16):
            a(f"v_add_f32_dpp v{ACC + k}, v{ACC + k}, v{ACC + k} {st} row_mask:0xf bank_mask:0xf")
    for t in range(1, 8):
        for k in range(0, 16, 2):
            a(f"v_pk_mov_b32 {vr(ACC + 16 * t + k, 2)}, {vr(ACC + k, 2)}, {vr(ACC + k, 2)} op_sel:[0,1]")
    a.label("L_noemb2")
    if opt.diag:
        a("s_waitcnt vmcnt(36)")
        stamp(8)

    def stage(S, loads, pending, extra_tail=(), site=None):
        loads = list(loads)
        need = [12, 18, 24]
        issued = 0
        cnt = 0
        for dy in range(3):
            a(f"s_waitcnt vmcnt({24 - need[dy] + pending + issued})")
            if dy == 0 and site:
                site()
            for q in range(4):
                for i in range(4):
                    for p in range(2):
                        a(mf(S, dy, q, i, p))
                        if loads and cnt % opt.spread == opt.spread - 1:
                            x = loads.pop(0)
                            for y in (x if isinstance(x, list) else [x]):
                                a(y)
                            issued += 1
                        cnt += 1
        assert not loads
        for x in extra_tail:
            a(x)

    def site0():
        a(f"s_cmp_eq_u32 s{S_CNT}, 2")
        a("s_cbranch_scc1 L_chk2")
        a.label("L_chk_back")

    def site1():
        a(f"s_cmp_eq_u32 s{S_CNT}, 4")
        a("s_cbranch_scc1 L_fl1_st")
        a.label("L_fl1st_back")

    def site2():
        a(f"s_cmp_eq_u32 s{S_CNT}, 3")
        a("s_cbranch_scc1 L_fl1_ld")
        a.label("L_fl1_back")

    srd(a, R_W, P_W2, W_BYTES)
    a(f"s_add_u32 s{S_T3}, s{S_FL}, 8192")
    a(f"s_mov_b32 s{S_CNT}, 4")
    a.raw(".p2align 3")
    a.label("L_loop")
    for S in range(3):
        tail = list(ADV)
        if S == 2:
            tail += [f"s_sub_u32 s{S_CNT}, s{S_CNT}, 1", f"s_cmp_lg_u32 s{S_CNT}, 0"]
        stage(S, stage_loads((S + 2) % 3), 24, tail, site=[site0, site1, site2][S])
    a("s_cbranch_scc1 L_loop")
    stage(0, stage_loads(2), 24, ADV)
    stage(1, stage_loads(0), 24)
    srd(a, R_G, P_G2, 1024)
    srd(a, R_B, P_B2, 1024)
    a(f"s_lshl_b32 s{S_T0}, s{S_NT}, 7")
    a(f"s_cmp_eq_u32 s{S_LAY}, 0")
    a(f"s_cselect_b32 s{S_T2}, {OOB:#x}, s{S_XOFF}")
    a(f"s_lshl_b32 s{S_T1}, s{S_WAVE}, 13")
    a(f"v_add_u32 v8, s{S_T1}, v2")
    a("v_add_u32 v9, 0x10000, v8")
    a(f"s_lshl_b32 s{S_T1}, s{S_WAVE}, 15")
    a(f"v_add_u32 v10, s{S_T1}, v2")
    pre = gb_loads() + x_loads(S_T2)
    stage(2, pre, 24)
    a(f"s_cmp_gt_u32 s{S_UJOB}, s{S_LAY}")
    a("s_cbranch_scc1 L_wdma")
    a(f"s_waitcnt vmcnt({len(pre)})")
    a.label("L_st14_back")
    for w in range(1, 4):
        a(f"s_cmp_eq_u32 s{S_WAVE}, {w}")
        a(f"s_cbranch_scc1 L_last{w}")

    def yreg(p, e, q):
        return Y + 16 * (2 * p + e) + 4 * q
    for w in range(4):
        a.label(f"L_last{w}")
        rows = [i for i in range(4) if i != w] + [w]
        prev = None
        for i in rows:
            wr = []
            if prev is not None:
                for q in range(4):
                    for p in range(2):
                        t = p * 4 + q
                        wr.append(f"ds_write_b128 v{8 + prev // 2}, {vr(acc(prev, p, q), 4)} offset:{(prev % 2) * 32768 + t * 1024}")
            n = 0
            for dy in range(3):
                for q in range(4):
                    for p in range(2):
                        a(mf(0, dy, q, i, p))
                        if wr and n >= 2 and n % 2 == 0:
                            a(wr.pop(0))
                        n += 1
            prev = i
        a("s_waitcnt lgkmcnt(0)")
        a("s_barrier")
        stamp(9)
        for t in range(8):
            p, q = t // 4, t % 4
            for xi in range(4):
                if xi != w:
                    a(f"ds_read_b128 {vr(acc(xi, p, q), 4)}, v10 offset:{xi * 8192 + t * 1024}")
        if w < 3:
            a("s_branch L_join")
    a.label("L_join")
    NEG = "neg_lo:[0,1] neg_hi:[0,1]"
    a("v_mov_b32 v8, 0.5")
    for t in range(8):
        p, q = t // 4, t % 4
        a(f"s_waitcnt lgkmcnt({min(15, 3 * (7 - t))})")
        for h in range(2):
            y0 = vr(yreg(p, 0, q) + 2 * h, 2)
            y1 = vr(yreg(p, 1, q) + 2 * h, 2)
            M = [vr(acc(xi, p, q) + 2 * h, 2) for xi in range(4)]
            a(f"v_pk_add_f32 {y0}, {M[1]}, {M[2]}")
            a(f"v_pk_add_f32 {y1}, {M[1]}, {M[2]} {NEG}")
            a(f"v_pk_fma_f32 {y0}, {y0}, v[8:9], {M[0]} op_sel_hi:[1,0,1]")
            a(f"v_pk_fma_f32 {y1}, {y1}, v[8:9], {M[3]} op_sel_hi:[1,0,1] neg_lo:[0,0,1] neg_hi:[0,0,1]")
    a(f"s_cmp_lg_u32 s{S_LAY}, 0")
    a("s_cbranch_scc1 L_final")
    a(f"s_mov_b32 s{S_LAY}, 1")
    a(f"s_add_u32 s{S_UDST}, s{S_UDST}, {LAYER_STRIDE:#x}")
    a(f"s_mov_b32 s{S_LOFF}, {LAYER_STRIDE:#x}")
    a(f"s_add_u32 s{S_STB}, s{S_STB}, {LAYER_STRIDE:#x}")
    a(f"s_add_u32 s{S_VST}, s{S_VST}, {LAYER_STRIDE:#x}")
    a(f"s_add_u32 s{S_FL}, s{S_FL}, {LAYER_STRIDE:#x}")
    a("s_branch L_layer")

    a.label("L_final")
    srd(a, R_T, P_OUT, X_BYTES)
    a("s_waitcnt vmcnt(0)")
    for k in range(16):
        Q, j = k // 8, k % 8
        t = 128 + 4 * k
        a(f"v_lshlrev_b32 v{t}, 16, v{XR + 2 * k}")
        a(f"v_and_b32 v{t + 1}, 0xffff0000, v{XR + 2 * k}")
        a(f"v_lshlrev_b32 v{t + 2}, 16, v{XR + 2 * k + 1}")
        a(f"v_and_b32 v{t + 3}, 0xffff0000, v{XR + 2 * k + 1}")
        for c in range(4):
            a(f"v_add_f32 v{t + c}, v{t + c}, v{Y + 16 * c + k}")
        a(f"v_cvt_pk_bf16_f32 v{t}, v{t}, v{t + 1}")
        a(f"v_cvt_pk_bf16_f32 v{t + 1}, v{t + 2}, v{t + 3}")
        a(f"s_add_u32 s{S_T0}, s{S_XOFF}, {(32 * Q + j) * 8192}")
        a(f"buffer_store_dwordx2 {vr(t, 2)}, v7, {sr(R_T, 4)}, s{S_T0} offen")
    if opt.diag:
        a("s_waitcnt vmcnt(0)")
        stamp(10)
        a("s_getreg_b32 s88, hwreg(HW_REG_XCC_ID)")
        a(f"v_writelane_b32 v{VD}, s88, 63")
        a(f"s_lshl_b32 s{S_T0}, s2, 2")
        a(f"s_add_u32 s{S_T0}, s{S_T0}, s{S_WAVE}")
        a(f"s_lshl_b32 s{S_T0}, s{S_T0}, 8")
        a(f"s_add_u32 s{S_T0}, s{S_T0}, {DBG_OFF:#x}")
        a("v_lshlrev_b32 v8, 2, v0")
        a(f"buffer_store_dword v{VD}, v8, {W4}, s{S_T0} offen")
    a.label("L_end")
    a("s_endpgm")

    a.label("L_fl1_ld")
    a(f"buffer_load_dwordx2 {vr(FLD, 2)}, v1, {W4}, s{S_T3} offen{POLL}")
    a("s_branch L_fl1_back")

    a.label("L_fl1_st")
    a("s_mov_b64 exec, 1")
    a(f"buffer_store_dwordx2 {vr(TAGP, 2)}, v12, {W4}, s{S_T3} offen{SYS}")
    a("s_mov_b64 exec, -1")
    a("s_branch L_fl1st_back")
    a.label("L_chk2")
    a(f"s_mov_b32 s{S_SPIN}, {opt.spin}")
    a("s_waitcnt vmcnt(24)")
    a.label("L_chk_loop")
    a(f"v_cmp_ne_u32 vcc, s{S_TAG}, v{FLD}")
    a(f"v_cmp_ne_u32 s[80:81], s{S_TAG}, v{FLD + 1}")
    a("s_nop 1")
    a("s_or_b64 s[80:81], s[80:81], vcc")
    a("s_cbranch_scc0 L_chk_back")
    a(f"buffer_load_dwordx2 {vr(FLD, 2)}, v1, {W4}, s{S_T3} offen{POLL}")
    a(f"s_sub_u32 s{S_SPIN}, s{S_SPIN}, 1")
    a("s_waitcnt vmcnt(0)")
    a(f"s_cmp_lg_u32 s{S_SPIN}, 0")
    a("s_cbranch_scc1 L_chk_loop")
    a("s_branch L_chk_back")

    a.label("L_wdma")
    for k in range(9):
        a(f"s_add_u32 m0, s{S_WL}, {1024 * k}")
        a("s_nop 0")
        a(f"buffer_load_dwordx4 v{64 + k}, {sr(R_W, 4)}, s{S_WSRC} offen lds")
    a(f"s_waitcnt vmcnt({len(pre) + 9})")
    a("s_branch L_st14_back")
    return name, 256, 256, W_LDS + 18432, kernel_desc(name, 512, 96, accum=256)


def get_opt(argv=None):
    ap = argparse.ArgumentParser()
    ap.add_argument("-o", default="standalone__adm_resblock__diffusion.s")
    ap.add_argument("--spread", type=int, default=2)
    ap.add_argument("--diag", type=int, default=0)
    ap.add_argument("--spin", type=int, default=100000)
    ap.add_argument("--sleep", type=int, default=1)
    ap.add_argument("--warm", type=int, default=0)
    ap.add_argument("--w1pos", type=int, default=0)
    ap.add_argument("--defer3", type=int, default=0)
    ap.add_argument("--list", type=int, default=0)
    return ap.parse_args(argv)


def main():
    opt = get_opt()
    a = Asm()
    name, g, blk, lds, desc = gen(a, opt)
    out = HEADER
    if opt.list:
        out += f"; @launch kernel={name} grid=({g},1,1) block=({blk},1,1) lds={lds}\n"
    else:
        out += f"; @launch grid=({g},1,1) block=({blk},1,1) lds={lds}\n"
    out += '.amdgcn_target "amdgcn-amd-amdhsa--gfx950"\n.text\n'
    out += a.text()
    out += '.section .rodata,"a"\n' + desc
    open(opt.o, "w").write(out)


if __name__ == "__main__":
    main()
```
